```python
import torch

def _softmax(x, axis=-1):
    return torch.softmax(x, dim=axis)
def _gelu(x):
    return torch.nn.functional.gelu(x, approximate="tanh")
def _silu(x):
    return torch.nn.functional.silu(x)
def _sigmoid(x):
    return torch.sigmoid(x)
def _layernorm(x, axis=-1, eps=1e-5):
    m = x.mean(dim=axis, keepdim=True)
    v = x.var(dim=axis, keepdim=True, unbiased=False)
    return (x - m) / torch.sqrt(v + eps)
def _scatter_add(tgt, idx, src, axis=0):
    return tgt.clone().index_add_(axis, idx, src)
def _segment_sum(src, seg, n):
    out = torch.zeros((n,) + src.shape[1:], dtype=src.dtype)
    return out.index_add_(0, seg, src)
def _pad(x, pw):
    flat = tuple(v for pair in reversed(pw) for v in pair)
    return torch.nn.functional.pad(x, flat)

kernel_name = 'recurrent_scan__sliding_block_cached__dense_activation_gelu__prompt'

def setup_inputs():

    _w = (lambda a: (lambda t: t.to(torch.bfloat16) if t.is_floating_point() else t)(torch.as_tensor(a)))
    def _A_setup():
        B, Sq, D = 1, 2048, 448
        Hq, Hkv, Sk, Dh = 16, 8, 2048, 256
        assert Hq % Hkv == 0, (Hq, Hkv)
        return {
            "x": _w((lambda *s: torch.randn(*s, dtype=torch.bfloat16) * 0.05)(B, Sq, D)),
            "k_cache": _w((lambda *s: torch.randn(*s, dtype=torch.bfloat16) * 3.2)(B, Hkv, Sk, Dh)),
            "v_cache": _w((lambda *s: torch.randn(*s, dtype=torch.bfloat16) * 3.2)(B, Hkv, Sk, Dh)),
            "wq": _w((lambda *s: torch.randn(*s, dtype=torch.bfloat16) * 3.2)(D, Hq * Dh) * (D ** -0.5)),
            "wo": _w((lambda *s: torch.randn(*s, dtype=torch.bfloat16) * 3.2)(Hq * Dh, D) * ((Hq * Dh) ** -0.5)),
        }
    _A_in = _A_setup()

    def _B_setup():
        B, S, D, F = 1, 2048, 448, 1792
        return {
            "x": _w((lambda *s: torch.randn(*s, dtype=torch.bfloat16) * 0.05)(B, S, D)),
            "w1": _w((lambda *s: torch.randn(*s, dtype=torch.bfloat16) * 3.2)(D, F) * (D ** -0.5)),
            "b1": _w((lambda *s: torch.randn(*s, dtype=torch.bfloat16) * 3.2)(F) * 0.01),
            "w2": _w((lambda *s: torch.randn(*s, dtype=torch.bfloat16) * 0.4)(F, D) * (F ** -0.5)),
            "b2": _w((lambda *s: torch.randn(*s, dtype=torch.bfloat16) * 0.4)(D) * 0.01),
        }
    _B_in = _B_setup()

    return {
        "A_x": _A_in["x"],
        "A_k_cache": _A_in["k_cache"],
        "A_v_cache": _A_in["v_cache"],
        "A_wq": _A_in["wq"],
        "A_wo": _A_in["wo"],
        "B_x": _B_in["x"],
        "B_w1": _B_in["w1"],
        "B_b1": _B_in["b1"],
        "B_w2": _B_in["w2"],
        "B_b2": _B_in["b2"],
    }

def reference(A_x, A_k_cache, A_v_cache, A_wq, A_wo, B_x, B_w1, B_b1, B_w2, B_b2):
    def _A_ref(x, k_cache, v_cache, wq, wo):
        B, Sq, D = x.shape
        Hq, Dh = 16, 256
        Hkv, Sk = k_cache.shape[1], k_cache.shape[2]
        W = min(4096, max(256, Sk // 4))
        rep = Hq // Hkv
        q = (lambda x, *d: x.permute(*d))((x @ wq).reshape(B, Sq, Hq, Dh), 0, 2, 1, 3)
        k = (lambda x, n, axis: torch.repeat_interleave(x, n, dim=axis))(k_cache[:, :, Sk - W:, :], rep, axis=1)
        v = (lambda x, n, axis: torch.repeat_interleave(x, n, dim=axis))(v_cache[:, :, Sk - W:, :], rep, axis=1)
        scores = torch.einsum("bhqd,bhkd->bhqk", q, k) * (Dh ** -0.5)
        p = _softmax(scores, axis=-1)
        o = torch.einsum("bhqk,bhkd->bhqd", p, v)
        return (lambda x, *d: x.permute(*d))(o, 0, 2, 1, 3).reshape(B, Sq, Hq * Dh) @ wo

    def _B_ref(x, w1, b1, w2, b2):
        h = torch.einsum("bsd,df->bsf", x, w1) + b1
        h = _gelu(h)
        return torch.einsum("bsf,fd->bsd", h, w2) + b2

    x = A_x
    xn = _layernorm(x, axis=-1)
    s = _A_ref(xn, A_k_cache, A_v_cache, A_wq, A_wo)
    g = _silu(_B_ref(xn, B_w1, B_b1, B_w2, B_b2))
    return x + s * g
```

```python
import re

def _expand(tok):
    tok = tok.strip()
    neg = tok.startswith('-')
    if neg: tok = tok[1:]
    if tok.startswith('abs(') or tok.startswith('|'):
        tok = tok.replace('abs(', '').replace(')', '').replace('|', '')
    m = re.fullmatch(r'([vas])(\d+)', tok)
    if m: return [(m.group(1), int(m.group(2)))]
    m = re.fullmatch(r'([vas])\[(\d+):(\d+)\]', tok)
    if m: return [(m.group(1), i) for i in range(int(m.group(2)), int(m.group(3)) + 1)]
    if tok == 'vcc': return [('vcc', 0)]
    if tok == 'exec': return [('exec', 0)]
    if tok == 'm0': return [('m0', 0)]
    return []

TRANS = ('v_exp_f32', 'v_rcp_f32', 'v_rsq_f32', 'v_sqrt_f32', 'v_log_f32')

class Ins:
    __slots__ = ('text', 'op', 'kind', 'rd', 'wr', 'srcc', 'srcab', 'tok', 'lds', 'cost', 'earliest', 'deadline', 'pos', 'waited', 'note', 'label')
    def __init__(self, text, lds=None, tok=None, note=None):
        self.text = text; self.lds = lds; self.tok = tok; self.note = note
        self.earliest = None; self.deadline = None; self.pos = None; self.waited = None; self.label = False
        self.srcc = []; self.srcab = []
        t = text.strip()
        if t.endswith(':') or t.startswith('.') or t.startswith(';'):
            self.op = ''; self.kind = 'label'; self.rd = []; self.wr = []; self.cost = 0; self.label = True
            return
        sp = t.split(None, 1)
        op = sp[0]; self.op = op
        rest = sp[1] if len(sp) > 1 else ''
        rest = rest.split(';')[0]
        ops = [o.strip() for o in rest.split(',')] if rest.strip() else []
        if ops:
            ops[-1] = ops[-1].split()[0] if not ops[-1].startswith('abs') else ops[-1]
            ops = [o.split()[0] if ' ' in o else o for o in ops]
        E = [_expand(o) for o in ops]
        rd, wr = [], []
        self.cost = 1
        if op == 'WAIT_LGKM' or op == 'WAIT_VM':
            self.kind = 'wait'
        elif op.startswith('v_mfma'):
            self.kind = 'mfma'; wr = E[0]; rd = E[1] + E[2] + E[3]; self.srcc = E[3]; self.srcab = E[1] + E[2]
        elif op.startswith('ds_read'):
            self.kind = 'ds'; wr = E[0]; rd = E[1]
        elif op.startswith('ds_write'):
            self.kind = 'ds'; rd = E[0] + E[1]
        elif op.startswith('buffer_load'):
            self.kind = 'vmem'
            if ' lds' in t:
                rd = E[0] + E[1] + E[2] + [('m0', 0)]; self.cost = 2
            else:
                wr = E[0]; rd = E[1] + E[2] + E[3]
        elif op.startswith('buffer_store'):
            self.kind = 'vmem'; rd = E[0] + E[1] + E[2] + E[3]; self.cost = 2
        elif op.startswith('buffer_'):
            self.kind = 'vmem'
        elif op.startswith('s_load') or op in ('s_memtime', 's_memrealtime'):
            self.kind = 'smem'; wr = E[0]; rd = E[1] if len(E) > 1 else []
        elif op.startswith('s_'):
            self.kind = 'salu'
            if op.startswith(('s_cmp', 's_cbranch', 's_branch', 's_barrier', 's_nop', 's_waitcnt', 's_endpgm', 's_setprio', 's_sleep', 's_bitcmp', 's_setpc')):
                rd = sum(E, [])
            else:
                wr = E[0] if E else []; rd = sum(E[1:], [])
                if 'saveexec' in op: wr = wr + [('exec', 0)]
        elif op.startswith('v_'):
            self.kind = 'valu'
            if op.startswith('v_cmp'):
                wr = E[0]; rd = sum(E[1:], [])
            elif op.startswith(('v_permlane16_swap', 'v_permlane32_swap')):
                wr = E[0] + E[1]; rd = E[0] + E[1]
            elif op.startswith(('v_fmac', 'v_dot2c')):
                wr = E[0]; rd = sum(E, [])
            elif op.startswith(('v_add_co', 'v_sub_co', 'v_addc_co')):
                wr = E[0] + E[1]; rd = sum(E[2:], [])
            else:
                wr = E[0]; rd = sum(E[1:], [])
                if op.startswith('v_cndmask') and len(E) == 3: rd = rd + [('vcc', 0)]
            if op.split('_e32')[0].split('_e64')[0] in TRANS: self.cost = 2
        else:
            raise ValueError('unknown op ' + text)
        self.rd = rd; self.wr = wr
    def __repr__(self): return self.text

def wait_lgkm(tok): return Ins('WAIT_LGKM', tok=tok)
def wait_vm(tok): return Ins('WAIT_VM', tok=tok)

def resolve_waits(seq):
    out = []
    lg = []
    vm = []
    for ins in seq:
        if ins.kind == 'wait':
            toks = ins.tok if isinstance(ins.tok, (list, tuple)) else [ins.tok]
            q = lg if ins.op == 'WAIT_LGKM' else vm
            idx = -1
            for t in toks:
                if t == 'all': idx = len(q) - 1; break
                assert t.pos is not None, f'wait for an instruction not yet issued: {t}'
                if t in q: idx = max(idx, q.index(t))
            if idx < 0: continue
            n = len(q) - 1 - idx
            mx = 15 if ins.op == 'WAIT_LGKM' else 63
            if n > mx:
                n = mx; idx = len(q) - 1 - n
            name = 'lgkmcnt' if ins.op == 'WAIT_LGKM' else 'vmcnt'
            prev = out[-1] if out else None
            if prev is not None and prev.op == 's_waitcnt' and name not in prev.text and prev.note == 'auto':
                prev.text += f' {name}({n})'
                p = len(out) - 1
            else:
                w = Ins(f's_waitcnt {name}({n})', note='auto'); w.pos = len(out); out.append(w); p = w.pos
            for d in q[:idx + 1]: d.waited = p
            del q[:idx + 1]
            continue
        ins.pos = len(out); out.append(ins)
        if ins.kind == 'ds': lg.append(ins)
        elif ins.kind == 'vmem': vm.append(ins)
        elif ins.op == 's_waitcnt':
            m = re.search(r'lgkmcnt\((\d+)\)', ins.text)
            if m:
                n = int(m.group(1)); k = len(lg) - n
                if k > 0:
                    for d in lg[:k]: d.waited = ins.pos
                    del lg[:k]
            m = re.search(r'vmcnt\((\d+)\)', ins.text)
            if m:
                n = int(m.group(1)); k = len(vm) - n
                if k > 0:
                    for d in vm[:k]: d.waited = ins.pos
                    del vm[:k]
    return out

def check_data_waits(seq):
    pend = {}
    for ins in seq:
        if ins.label: continue
        for r in ins.rd + ins.wr:
            p = pend.get(r)
            if p is not None and p is not ins:
                if p.waited is None or p.waited > ins.pos:
                    raise AssertionError(f'use of {r} before wait: producer [{p.pos}] {p.text} consumer [{ins.pos}] {ins.text}')
                del pend[r]
        if ins.kind in ('ds', 'vmem') and ins.wr:
            for r in ins.wr: pend[r] = ins

def _states(ins):
    if ins.label: return 0
    if ins.op == 's_nop': return int(ins.text.split()[1]) + 1
    return 1

def pad_hazards(seq):
    out = []
    for ins in seq:
        if ins.label:
            out.append(ins); continue
        need = 0
        dist = 0
        rd = set(ins.rd); wr = set(ins.wr)
        is_valu = ins.kind == 'valu'; is_mfma = ins.kind == 'mfma'; is_mem = ins.kind in ('ds', 'vmem')
        for p in reversed(out):
            if p.label: continue
            if dist >= 20: break
            pw = set(p.wr)
            req = 0
            if p.kind == 'valu':
                if is_mfma and (pw & rd): req = max(req, 2)
                if is_valu and ins.op.startswith('v_permlane') and (pw & rd): req = max(req, 2)
                if is_valu and ins.op.startswith(('v_readfirstlane', 'v_readlane')) and (pw & rd): req = max(req, 1)
                if is_valu and '_dpp' in ins.op and (pw & rd): req = max(req, 2)
                if p.cost == 2 and is_valu and (pw & rd): req = max(req, 1)
                if p.cost == 2 and (is_mem or is_mfma) and (pw & rd): req = max(req, 2)
                if p.op.startswith('v_dot2') and (pw & (rd | wr)):
                    same_c = ins.op == p.op and not (pw & set(sum([_expand(o) for o in ins.text.split(None,1)[1].split(',')[1:3]], [])))
                    if not same_c: req = max(req, 3)
                if ('sdwa' in p.op or 'op_sel' in p.text) and is_valu and (pw & (rd | wr)): req = max(req, 1)
                sw = {r for r in pw if r[0] in ('s', 'vcc')}
                if sw & rd:
                    if is_valu: req = max(req, 2)
                    if ins.kind == 'vmem': req = max(req, 5)
                    if ins.kind in ('salu', 'smem'): req = max(req, 2)
                if ('vcc', 0) in pw and ins.op.startswith('s_cbranch_vcc'): req = max(req, 2)
            if p.kind == 'mfma':
                if is_mfma:
                    if pw & set(ins.srcab): req = max(req, 8)
                    c = set(ins.srcc)
                    if pw & c and c != pw: req = max(req, 6)
                    if pw & wr and wr != pw: req = max(req, 8)
                elif (is_valu or is_mem) and (pw & (rd | wr)): req = max(req, 8)
                if is_valu and (set(p.srcc) & wr): req = max(req, 3)
            if p.kind == 'salu' and ('m0', 0) in pw and ('m0', 0) in rd and ins.kind == 'vmem': req = max(req, 1)
            if p.kind == 'salu' and ('exec', 0) in pw and False: pass
            if p.kind == 'vmem' and p.op.startswith('buffer_store') and ('x4' in p.op or 'x3' in p.op):
                data = set(_expand(p.text.split(None, 1)[1].split(',')[0]))
                if data & wr: req = max(req, 2)
            if req - dist > need: need = req - dist
            dist += _states(p)
        if need > 0:
            out.append(Ins(f's_nop {need - 1}', note='hz'))
        out.append(ins)
    return out

def verify_lds(seq):
    bars = [i.pos for i in seq if i.op == 's_barrier']
    import bisect
    def barrier_between(a, b):
        k = bisect.bisect_right(bars, a)
        return k < len(bars) and bars[k] < b
    G = 16
    lastw = {}
    reads = {}
    for ins in seq:
        if not ins.lds: continue
        d = ins.lds
        gr = set()
        for lo, hi in d['ranges']:
            gr.update(range(lo // 64, (hi + 63) // 64))
        if d['rw'] == 'r':
            seen = set()
            for g in gr:
                w = lastw.get(g)
                assert w is not None, f'LDS read of unwritten {g*64}: {ins.text}'
                for ww in w:
                    if id(ww) in seen: continue
                    seen.add(id(ww))
                    assert ww.lds['tag'] == d['tag'], f'LDS tag mismatch: read {ins.text} wants {d["tag"]} found {ww.lds["tag"]}'
                    assert ww.waited is not None and ww.waited < ins.pos, f'LDS RAW no wait: {ww.text} -> {ins.text} tag {d["tag"]}'
                    if not d.get('private'):
                        assert barrier_between(ww.waited, ins.pos), f'LDS RAW no barrier: [{ww.pos},{ww.waited}] {ww.text} -> [{ins.pos}] {ins.text} tag {d["tag"]}'
                reads.setdefault(g, []).append(ins)
        else:
            seen = set()
            for g in gr:
                for r in reads.get(g, []):
                    if id(r) in seen: continue
                    seen.add(id(r))
                    assert r.waited is not None and r.waited < ins.pos, f'LDS WAR no wait: {r.text} -> {ins.text}'
                    if not (d.get('private') and r.lds.get('private')):
                        assert barrier_between(r.waited, ins.pos), f'LDS WAR no barrier: [{r.pos},{r.waited}] {r.text} tag {r.lds["tag"]} -> [{ins.pos}] {ins.text} tag {d["tag"]}'
                prev = lastw.get(g)
                if prev and prev[0].lds['tag'] == d['tag'] and not reads.get(g):
                    prev.append(ins)
                else:
                    if prev and not reads.get(g):
                        for ww in prev:
                            assert ww.waited is not None and ww.waited < ins.pos, f'LDS WAW: {ww.text} -> {ins.text}'
                    lastw[g] = [ins]
                reads[g] = []
```

```python
import sys, math, struct
from asmlib import *

NAME = "recurrent_scan__sliding_block_cached__dense_activation_gelu__prompt"
PLANE = 2048 * 448 * 2
def f32(x): return "0x%08x" % struct.unpack("<I", struct.pack("<f", x))[0]

S_X, S_WQ, S_W1, S_K, S_V, S_WO, S_W2, S_WS, S_B1, S_CODE = 36, 40, 44, 48, 52, 56, 60, 64, 68, 72
S_W, S_HH, S_G, S_J, S_TT, S_W4K, S_SOFF, S_STO, S_QC, S_C3, S_T0, S_T1, S_BAD = 76, 77, 78, 79, 80, 81, 82, 83, 84, 85, 86, 87, 88
def srd(b): return f"s[{b}:{b+3}]"
V_ACC = 0
V_XR = 128
V_S = 128
V_P = 160
V_L = 168
V_NM = 176
V_ONE = 184
V_T = 188
V_DQ, V_D1, V_DK, V_DV, V_DO = 204, 208, 212, 216, 220
V_RA = 224
V_XW, V_XRD, V_HW, V_HR, V_OW, V_OR, V_ST, V_RSTD, V_NB, V_C1, V_RL0, V_RL1, V_LANE, V_DUM = range(242, 256)
A_RING, A_XB, A_H, A_Q = 0, 32, 48, 104
def a_of(kap, tg):
    idx = kap * 2 + tg
    if idx < 22: return 168 + 4 * idx
    if idx < 26: return 32 + 4 * (idx - 22)
    return 104 + 4 * (idx - 26)
SLOT = 16384
SCR_A, SCR_B = 9 * SLOT, 8 * SLOT
D = 6

def vr(b, n): return f"v[{b}:{b+n-1}]"
def ar(b, n): return f"a[{b}:{b+n-1}]"
MF = "v_mfma_f32_16x16x32_bf16"

class Step:
    def __init__(s, mf, reads=(), needs=(), group=None, name=""):
        s.mf = mf; s.reads = list(reads); s.needs = list(needs); s.group = group; s.name = name
        s.must = []
        s.fill = []

class Group:
    def __init__(g, kind, srdb, vo, soff, slot=None, tag=None):
        g.kind = kind; g.srdb = srdb; g.vo = vo; g.soff = soff; g.slot = slot; g.tag = tag
        g.first_read = None; g.last_use = None; g.ins = None

def gen_k1(opt):
    dbg = opt.get("dbg", 0)
    pro = []
    P = lambda t, **k: (pro.append(Ins(t, **k)), pro[-1])[1]
    steps = []; groups = []; barriers = []; streams = []
    fr = [0]
    def frag():
        b = A_RING + 4 * (fr[0] % 8); fr[0] += 1; return b

    def lds_r(rs, tag, **k): return dict(rw='r', ranges=rs, tag=tag, **k)
    def lds_w(rs, tag, **k): return dict(rw='w', ranges=rs, tag=tag, **k)

    class Rd:
        def __init__(r, kind, dst, grps, pat, off, half_off):
            r.kind = kind; r.dst = dst; r.grps = grps; r.pat = pat; r.off = off; r.half_off = half_off
    RA = {}
    def ra(pat, region): return RA[(pat, region)]
    def make_reads(r):
        g0 = r.grps[0]
        base = g0.slot * SLOT + r.off
        region = base // 65536; imm = base % 65536
        rs = [(g.slot * SLOT + (r.off // 4096) * 4096, g.slot * SLOT + (r.off // 4096) * 4096 + 4096) for g in r.grps]
        outl = []
        if len(r.grps) == 2: assert r.grps[1].slot == g0.slot + 1
        def tagged(text):
            i = Ins(text); i.lds = lds_r(rs[:1], g0.tag)
            return i
        if r.kind == 'tr':
            assert imm + r.half_off < 65536
            a = tagged(f"ds_read_b64_tr_b16 {ar(r.dst,2)}, v{ra(r.pat, region)} offset:{imm}")
            b = tagged(f"ds_read_b64_tr_b16 {ar(r.dst+2,2)}, v{ra(r.pat, region)} offset:{imm + r.half_off}")
            outl = [a, b]
        else:
            outl = [tagged(f"ds_read_b128 {ar(r.dst,4)}, v{ra(r.pat, region)} offset:{imm}")]
        if len(r.grps) == 2:
            for i in outl: i.lds['ranges'] = rs
        return outl

    xw_ins = {}; xb_ins = {}
    p1_first = []
    for ks in range(14):
        sl = 3 * (ks % 3)
        gq0 = Group('wq', S_WQ, V_DQ, ks * 32 * 8192, slot=sl, tag=('wq', ks))
        gq1 = Group('wq', S_WQ, V_DQ, ks * 32 * 8192 + 512, slot=sl + 1, tag=('wq', ks))
        g1 = Group('w1', S_W1, V_D1, ks * 32 * 3584, slot=sl + 2, tag=('w1', ks))
        groups += [gq0, gq1, g1]
        p1_first.append(len(steps))
        xb = [A_XB + (ks % 2) * 8 + tg * 4 for tg in range(2)]
        for mb in range(16):
            f = frag()
            mfs = []
            for tg in range(2):
                acc = V_ACC + (mb * 2 + tg) * 4
                c = "0" if ks == 0 else vr(acc, 4)
                mfs.append(Ins(f"{MF} {vr(acc,4)}, {ar(f,4)}, {ar(xb[tg],4)}, {c}"))
            steps.append(Step(mfs, [Rd('tr', f, [gq0, gq1], ('wq', mb % 4), (mb // 4) * 4096, 512)], group=[gq0, gq1], name=f"q{ks}.{mb}"))
        for i in range(7):
            f = frag()
            mfs = []
            for tg in range(2):
                acc = A_H + (i * 2 + tg) * 4
                mfs.append(Ins(f"{MF} {ar(acc,4)}, {ar(f,4)}, {ar(xb[tg],4)}, {ar(acc,4)}"))
            steps.append(Step(mfs, [Rd('tr', f, [g1], ('w1', i % 2), (i // 2) * 4096, 512)], group=[g1], name=f"h{ks}.{i}"))
    p2_start = len(steps)
    p1_first.append(p2_start)
    for ks in range(14): barriers.append(p1_first[ks + 1] - D - 1)

    def ln_piece(p):
        st = []
        t = V_T
        for dw in range(4):
            x = V_XR + p * 4 + dw
            st.append(Ins(f"v_lshlrev_b32 v{t+(dw%2)*2}, 16, v{x}"))
            st.append(Ins(f"v_and_b32 v{t+(dw%2)*2+1}, 0xffff0000, v{x}"))
            st.append(Ins(f"v_fma_f32 v{t+(dw%2)*2}, v{t+(dw%2)*2}, v{V_RSTD}, v{V_NB}"))
            st.append(Ins(f"v_fma_f32 v{t+(dw%2)*2+1}, v{t+(dw%2)*2+1}, v{V_RSTD}, v{V_NB}"))
            st.append(Ins(f"v_cvt_pk_bf16_f32 v{t+4+dw}, v{t+(dw%2)*2}, v{t+(dw%2)*2+1}"))
        base = SCR_A + (p % 2) * 4096
        w = Ins(f"ds_write_b128 v{V_XW}, {vr(t+4,4)} offset:{(p%2)*4096}", lds=lds_w([(base, base + 4096)], ('xn', p)))
        st.append(w); xw_ins[p] = w
        return st
    def xb_reads(p):
        base = SCR_A + (p % 2) * 4096
        l = [Ins(f"ds_read_b128 {ar(A_XB + (p%2)*8 + tg*4, 4)}, v{V_XRD} offset:{(p%2)*4096 + tg*1024}", lds=lds_r([(base, base + 4096)], ('xn', p))) for tg in range(2)]
        xb_ins[p] = l
        return l
    bar_extra = {}
    for p in range(1, 14):
        e = p1_first[p - 1] if p == 1 else barriers[p - 2] + 1
        st = ln_piece(p)
        streams.append((st, e, barriers[p - 1] - 1))
        bar_extra.setdefault(barriers[p - 1], []).append(xw_ins[p])
        rd = xb_reads(p)
        steps[barriers[p - 1] + 1].must += rd
        steps[p1_first[p]].needs += rd

    gK = [Group('k', S_K, V_DK, j * 16384, tag=('k', j)) for j in range(16)]
    gV = [Group('v', S_V, V_DV, j * 16384, tag=('v', j)) for j in range(16)]
    s_first = {}; s_end = {}; pv_first = {}; pv_end = {}
    def s_steps(j):
        s_first[j] = len(steps)
        groups.append(gK[j])
        for kk in range(8):
            for kb in range(2):
                f = frag(); mfs = []
                for tg in range(2):
                    acc = V_S + (j % 2) * 16 + (kb * 2 + tg) * 4
                    c = vr(acc, 4) if kk else ("0" if j < 2 else vr(V_NM + tg * 4, 4))
                    mfs.append(Ins(f"{MF} {vr(acc,4)}, {ar(f,4)}, {ar(A_Q + (kk*2+tg)*4, 4)}, {c}"))
                steps.append(Step(mfs, [Rd('b128', f, [gK[j]], ('k', kk % 2), (kk // 2) * 4096 + kb * 2048, 0)], group=[gK[j]], name=f"s{j}.{kk}.{kb}"))
        s_end[j] = len(steps)
    def pbuf(j): return V_P if j < 15 else V_S
    def pv_steps(j):
        V_P = pbuf(j)
        pv_first[j] = len(steps)
        groups.append(gV[j])
        for db in range(16):
            f = frag(); mfs = []
            for tg in range(2):
                acc = V_ACC + (db * 2 + tg) * 4
                c = vr(acc, 4) if j else "0"
                mfs.append(Ins(f"{MF} {vr(acc,4)}, {ar(f,4)}, {vr(V_P + tg*4, 4)}, {c}"))
            steps.append(Step(mfs, [Rd('tr', f, [gV[j]], ('v', db % 4), (db // 4) * 4096, 2048)], group=[gV[j]], name=f"pv{j}.{db}"))
        mfs = [Ins(f"{MF} {vr(V_L+tg*4,4)}, {vr(V_ONE,4)}, {vr(V_P + tg*4, 4)}, {vr(V_L+tg*4,4) if j else '0'}") for tg in range(2)]
        steps.append(Step(mfs, name=f"rs{j}"))
        pv_end[j] = len(steps)
    s_steps(0)
    for j in range(16):
        if j < 15: s_steps(j + 1)
        pv_steps(j)
    p3_start = len(steps)
    barriers.append(s_first[1] - D - 1)
    p2bar = {}
    for j in range(16):
        p2bar[j] = pv_end[j] - D - 1
        barriers.append(p2bar[j])

    q13 = p1_first[13]
    qfin = []
    for kk in range(8):
        for tg in range(2):
            t = V_T + ((kk * 2 + tg) % 2) * 4
            st = []
            a0 = V_ACC + ((2 * kk) * 2 + tg) * 4; a1 = V_ACC + ((2 * kk + 1) * 2 + tg) * 4
            for r in range(4): st.append(Ins(f"v_mul_f32 v{a0+r}, s{S_QC}, v{a0+r}"))
            for r in range(4): st.append(Ins(f"v_mul_f32 v{a1+r}, s{S_QC}, v{a1+r}"))
            st.append(Ins(f"v_cvt_pk_bf16_f32 v{t}, v{a0}, v{a0+1}")); st.append(Ins(f"v_cvt_pk_bf16_f32 v{t+1}, v{a0+2}, v{a0+3}"))
            st.append(Ins(f"v_cvt_pk_bf16_f32 v{t+2}, v{a1}, v{a1+1}")); st.append(Ins(f"v_cvt_pk_bf16_f32 v{t+3}, v{a1+2}, v{a1+3}"))
            st2 = [Ins(f"v_permlane32_swap_b32 v{t}, v{t+2}"), Ins(f"v_permlane32_swap_b32 v{t+1}, v{t+3}")]
            st3 = [Ins(f"v_permlane16_swap_b32 v{t}, v{t+2}"), Ins(f"v_permlane16_swap_b32 v{t+1}, v{t+3}")]
            st4 = [Ins(f"v_accvgpr_write_b32 a{A_Q + (kk*2+tg)*4 + r}, v{t+r}") for r in range(4)]
            for i in st + st2 + st3 + st4:
                i.earliest = q13 + 2 * kk + 2; i.deadline = s_first[0] + 2 * kk
            qfin.append((st, st2, st3, st4))
    qs = []
    for kk in range(8):
        A, B = qfin[2 * kk], qfin[2 * kk + 1]
        qs += A[0] + B[0][:2] + A[1] + B[0][2:4] + A[2] + B[0][4:6] + A[3] + B[0][6:]
        nxt = []
        qs += [Ins("s_nop 1")] if False else []
        qs += B[1]; qs += B[2]; qs += B[3]
    streams.append((qs, None, None))

    for j in range(16):
        sb = V_S + (j % 2) * 16
        ex = []
        if j == 0:
            for tg in range(2):
                v = [sb + (kb * 2 + tg) * 4 + r for kb in range(2) for r in range(4)]
                m = V_T + 8 + tg * 2
                ex += [Ins(f"v_max3_f32 v{m}, v{v[0]}, v{v[1]}, v{v[2]}"), Ins(f"v_max3_f32 v{m}, v{m}, v{v[3]}, v{v[4]}"),
                       Ins(f"v_max3_f32 v{m}, v{m}, v{v[5]}, v{v[6]}"), Ins(f"v_max_f32 v{m}, v{m}, v{v[7]}")]
            for sw in ("v_permlane32_swap_b32", "v_permlane16_swap_b32"):
                for tg in range(2): ex.append(Ins(f"v_mov_b32 v{V_T+8+tg*2+1}, v{V_T+8+tg*2}"))
                for tg in range(2): ex.append(Ins(f"{sw} v{V_T+8+tg*2}, v{V_T+8+tg*2+1}"))
                for tg in range(2): ex.append(Ins(f"v_max_f32 v{V_T+8+tg*2}, v{V_T+8+tg*2}, v{V_T+8+tg*2+1}"))
            for tg in range(2):
                for r in range(4): ex.append(Ins(f"v_sub_f32 v{V_NM+tg*4+r}, {f32(-opt.get('moff', 32.0))}, v{V_T+8+tg*2}"))
        if j < 2:
            for kb in range(2):
                for tg in range(2):
                    for r in range(4):
                        x = sb + (kb * 2 + tg) * 4 + r
                        ex.append(Ins(f"v_add_f32 v{x}, v{x}, v{V_NM+tg*4}"))
        for kb in range(2):
            for tg in range(2):
                for r in range(4):
                    x = sb + (kb * 2 + tg) * 4 + r
                    ex.append(Ins(f"v_exp_f32 v{x}, v{x}"))
        cv = []
        for tg in range(2):
            for kb in range(2):
                x = sb + (kb * 2 + tg) * 4
                cv.append(Ins(f"v_cvt_pk_bf16_f32 v{pbuf(j)+tg*4+kb*2}, v{x}, v{x+1}"))
                cv.append(Ins(f"v_cvt_pk_bf16_f32 v{pbuf(j)+tg*4+kb*2+1}, v{x+2}, v{x+3}"))
        e0 = s_end[j] if j != 1 else max(s_end[1], pv_first[0])
        for i in ex: i.earliest = e0; i.deadline = pv_first[j]
        for i in cv: i.earliest = (pv_end[j - 1] if j < 15 else pv_first[14]) if j else s_end[0]; i.deadline = pv_first[j]
        streams.append((ex + cv, None, None))
    for u in range(14):
        j = u + 1
        a = A_H + u * 4; h = V_T + 8; w = V_T + 12
        st = []
        for r in range(4): st.append(Ins(f"v_accvgpr_read_b32 v{h+r}, a{a+r}"))
        for r in range(4): st.append(Ins(f"v_mul_f32 v{w+r}, v{h+r}, v{h+r}"))
        for r in range(4): st.append(Ins(f"v_fma_f32 v{w+r}, v{w+r}, s{S_C3}, v{V_C1}"))
        for r in range(4): st.append(Ins(f"v_mul_f32 v{w+r}, v{w+r}, v{h+r}"))
        for r in range(4): st.append(Ins(f"v_exp_f32 v{w+r}, v{w+r}"))
        for r in range(4): st.append(Ins(f"v_add_f32 v{w+r}, 1.0, v{w+r}"))
        for r in range(4): st.append(Ins(f"v_rcp_f32 v{w+r}, v{w+r}"))
        for r in range(4): st.append(Ins(f"v_mul_f32 v{h+r}, v{h+r}, v{w+r}"))
        st.append(Ins(f"v_cvt_pk_bf16_f32 v{w}, v{h}, v{h+1}")); st.append(Ins(f"v_cvt_pk_bf16_f32 v{w+1}, v{h+2}, v{h+3}"))
        base = SCR_A + (u % 2) * 2048
        wr = Ins(f"ds_write_b64 v{V_HW}, {vr(w,2)} offset:{(u%2)*2048}", lds=lds_w([(base, base + 2048)], ('h', u)))
        st.append(wr)
        streams.append((st, p2bar[j - 1] + 1, p2bar[j] - 1))
        bar_extra.setdefault(p2bar[j], []).append(wr)
        rd = Ins(f"ds_read_b128 {ar(a,4)}, v{V_HR} offset:{(u%2)*2048}", lds=lds_r([(base, base + 2048)], ('h', u)))
        steps[p2bar[j] + 1].must.append(rd)
        bar_extra.setdefault(p2bar[j + 1] if j + 1 < 16 else None, []).append(rd)
    bar_extra.pop(None, None)

    store_flags = opt.get("store_flags", "")
    def epilogue(accb, seg, plane_off, e, dl):
        st = []
        t = V_P
        for tg in range(2):
            for tt_ in range(2):
                x = accb + (tt_ * 2 + tg) * 4
                st.append(Ins(f"v_cvt_pk_bf16_f32 v{t+tg*4+tt_*2}, v{x}, v{x+1}"))
                st.append(Ins(f"v_cvt_pk_bf16_f32 v{t+tg*4+tt_*2+1}, v{x+2}, v{x+3}"))
        st.append(Ins(f"s_mov_b32 s{S_STO}, {plane_off + seg * 2048}"))
        for tg in range(2):
            st.append(Ins(f"buffer_store_dwordx4 {vr(t+tg*4,4)}, v{V_ST}, {srd(S_WS)}, s{S_STO} offen offset:{tg*1024} {store_flags}".rstrip()))
        return st
    f_first = []; nseg = 0
    epi = []
    for s in range(7):
        gA = Group('w2', S_W2, V_DO, s * 128, tag=('w2', s, 0)); gB = Group('w2', S_W2, V_DO, s * 128 + 128 * 896, tag=('w2', s, 1))
        groups += [gA, gB]
        f_first.append(len(steps))
        accb = V_S + (nseg % 2) * 16; nseg += 1
        for ks in range(7):
            g = gA if ks < 4 else gB
            for t in range(2):
                f = frag(); mfs = []
                for tg in range(2):
                    acc = accb + (t * 2 + tg) * 4
                    mfs.append(Ins(f"{MF} {vr(acc,4)}, {ar(f,4)}, {ar(A_H + (ks*2+tg)*4, 4)}, {vr(acc,4) if ks else '0'}"))
                steps.append(Step(mfs, [Rd('tr', f, [g], ('o', t), (ks % 4) * 4096, 2048)], group=[g], name=f"f{s}.{ks}.{t}"))
        epi.append((accb, s, 8 * PLANE, len(steps)))
    o_first = []
    for s in range(7):
        gs = [Group('wo', S_WO, V_DO, s * 128 + q * 128 * 896, tag=('wo', s, q)) for q in range(4)]
        groups += gs
        o_first.append(len(steps))
        accb = V_S + (nseg % 2) * 16; nseg += 1
        for kap in range(16):
            g = gs[kap // 4]
            for t in range(2):
                f = frag(); mfs = []
                for tg in range(2):
                    acc = accb + (t * 2 + tg) * 4
                    mfs.append(Ins(f"{MF} {vr(acc,4)}, {ar(f,4)}, {ar(a_of(kap, tg), 4)}, {vr(acc,4) if kap else '0'}"))
                steps.append(Step(mfs, [Rd('tr', f, [g], ('o', t), (kap % 4) * 4096, 2048)], group=[g], name=f"o{s}.{kap}.{t}"))
        epi.append((accb, s, 0, len(steps)))
    nsteps = len(steps)
    seg_first = f_first + o_first + [nsteps, nsteps]
    fbar = []
    for s in range(7):
        fbar.append(seg_first[s + 1] - D - 1); barriers.append(fbar[-1])
    for s in range(7):
        barriers.append(o_first[s] + 16 - D - 1)
        if s < 6: barriers.append(o_first[s] + 32 - D - 1)
    tail = []
    for n, (accb, s, po, e) in enumerate(epi):
        st = epilogue(accb, s, po, e, None)
        if e >= nsteps: tail += st
        else: streams.append((st, e, min(seg_first[n + 2], nsteps) - 1))
    ofin0 = [Ins(f"v_rcp_f32 v{V_RL0}, v{V_L}"), Ins(f"v_rcp_f32 v{V_RL1}, v{V_L+4}")]
    of_reads = []
    for b in range(4):
        st = list(ofin0) if b == 0 else []
        scr = SCR_A if b % 2 == 0 else SCR_B
        wrs = []
        for n, (kk, tg) in enumerate([(2 * b, 0), (2 * b, 1), (2 * b + 1, 0), (2 * b + 1, 1)]):
            t = V_T + (n % 2) * 4
            a0 = V_ACC + ((2 * kk) * 2 + tg) * 4; a1 = V_ACC + ((2 * kk + 1) * 2 + tg) * 4
            rl = V_RL0 + tg
            for r in range(4): st.append(Ins(f"v_mul_f32 v{a0+r}, v{a0+r}, v{rl}"))
            for r in range(4): st.append(Ins(f"v_mul_f32 v{a1+r}, v{a1+r}, v{rl}"))
            st.append(Ins(f"v_cvt_pk_bf16_f32 v{t}, v{a0}, v{a0+1}")); st.append(Ins(f"v_cvt_pk_bf16_f32 v{t+1}, v{a0+2}, v{a0+3}"))
            st.append(Ins(f"v_cvt_pk_bf16_f32 v{t+2}, v{a1}, v{a1+1}")); st.append(Ins(f"v_cvt_pk_bf16_f32 v{t+3}, v{a1+2}, v{a1+3}"))
            w = Ins(f"ds_write_b128 v{V_OW}, {vr(t,4)} offset:{(scr - SCR_B) + n*1024}", lds=lds_w([(scr, scr + SLOT)], ('o', b)))
            st.append(w); wrs.append(w)
        e = p3_start if b == 0 else fbar[b - 1] + 1
        streams.append((st, e, fbar[b] - 1))
        bar_extra.setdefault(fbar[b], []).extend(wrs)
        rds = []
        for hh in range(2):
            for n, (kk, tg) in enumerate([(2 * b, 0), (2 * b, 1), (2 * b + 1, 0), (2 * b + 1, 1)]):
                rds.append(Ins(f"ds_read_b128 {ar(a_of(hh*8+kk, tg),4)}, v{V_OR} offset:{(scr - SCR_B) + hh*4096 + n*1024}", lds=lds_r([(scr, scr + SLOT)], ('o', b))))
        streams.append((rds, fbar[b] + 1, fbar[b + 1] - 2))
        bar_extra.setdefault(fbar[b + 1], []).append(rds[-1])
        of_reads += rds
    steps[o_first[0]].needs += [of_reads[-1]]
    steps[f_first[0]].needs += [steps[p2bar[14] + 1].must[-1]]
    scr_free = {8: fbar[4], 9: fbar[3]}
    scr_free = {8: fbar[4], 9: fbar[4]}

    barriers = sorted(set(barriers))
    for si, st in enumerate(steps):
        for g in (st.group or []):
            if g.first_read is None: g.first_read = si - D
            g.last_use = si
    import bisect
    def bar_after(x):
        k = bisect.bisect_left(barriers, x); return barriers[k] if k < len(barriers) else None
    def bar_before(x):
        k = bisect.bisect_left(barriers, x); return barriers[k - 1] if k else -1
    free_at = {s: -1 for s in range(9)}
    p1slots_done = False
    cursor = 0
    pro_groups = []
    dma_pace = opt.get("dma_pace", 1)
    log = []
    def dma_ins(g):
        base = g.slot * SLOT
        l = [Ins(f"s_add_u32 m0, s{S_W4K}, {base}"), Ins(f"s_mov_b32 s{S_SOFF}, {g.soff}")]
        rs = [(base, base + SLOT)]
        for i in range(4):
            l.append(Ins(f"buffer_load_dwordx4 v{g.vo+i}, {srd(g.srdb)}, s{S_SOFF} offen offset:{i*1024} lds", lds=lds_w(rs, g.tag)))
        return l
    for g in groups:
        if g.slot is None:
            cands = dict(free_at)
            if g.kind in ('k', 'v', 'w2'): cands.pop(8, None); cands.pop(9, None)
            else:
                for s in (8, 9): cands[s] = max(cands.get(s, -1) if s in used_late else -1, scr_free[s])
            g.slot = min(cands, key=lambda s: (cands[s], s))
            fa = cands[g.slot]
            if g.slot >= 8: used_late.add(g.slot)
        else:
            fa = free_at[g.slot]
            used_late = set()
        free_at[g.slot] = bar_after(g.last_use)
        if free_at[g.slot] is None: free_at[g.slot] = 10**9
        g.ins = dma_ins(g)
        cert = bar_before(g.first_read)
        g.cert = cert
        if fa < 0:
            pro_groups.append(g); log.append((g.tag, g.slot, 'pro', cert)); continue
        start = max(fa + 1, cursor)
        pos = start
        steps[pos].must += g.ins[:3]
        for i in range(1, 4):
            pos += dma_pace
            steps[pos].must.append(g.ins[2 + i])
        cursor = pos + dma_pace
        assert pos < cert, f"group {g.tag} issued too late: {start}..{pos} cert {cert}"
        log.append((g.tag, g.slot, start, cert, cert - pos))
    if opt.get("log"):
        for l in log: print(l)
    cert_at = {}
    for g in groups: cert_at.setdefault(g.cert, []).append(g.ins[-1])

    idx = 0
    p1ra = [(('wq', m), r) for m in range(4) for r in range(2)] + [(('w1', m), r) for m in range(2) for r in range(3)]
    for k in p1ra: RA[k] = V_RA + idx; idx += 1
    p2k = [(('k', m), r) for m in range(2) for r in range(2)]
    for k in p2k: RA[k] = V_RA + idx; idx += 1
    assert idx == 18
    p2v = [(('v', m), r) for m in range(4) for r in range(2)]
    for n, k in enumerate(p2v): RA[k] = V_RA + n
    p3o = [(('o', m), r) for m in range(2) for r in range(3)]
    for n, k in enumerate(p3o): RA[k] = V_RA + 8 + n
    ra_v = [Ins(f"v_sub_u32 v{RA[k]}, v{RA[k]}, v{V_RL0}") for k in p2v]
    streams.append((ra_v, p2_start - 7 - D + 1, pv_first[0] - D - 1))
    ra_o = [Ins(f"s_mov_b32 s{S_T0}, 65536"), Ins(f"s_mov_b32 s{S_T1}, 131072")]
    for (k, r) in p3o:
        t = k[1]
        add = ["0", f"s{S_T0}", f"s{S_T1}"][r]
        ra_o.append(Ins(f"v_xad_u32 v{RA[(k, r)]}, v{V_RL1}, {t*32}, {add}"))
    streams.append((ra_o, p2_start + 2, p2_start + 40))

    def l2pf(srdb, vo): return Ins(f"buffer_load_dword v{V_DUM}, v{vo}, {srd(srdb)}, 0 offen")

    T = V_T
    P(f"s_cmp_ge_u32 s2, 256"); P("s_cbranch_scc1 L_k1_end")
    P("s_load_dwordx16 s[8:23], s[0:1], 0"); P("s_load_dwordx8 s[24:31], s[0:1], 64"); P("s_load_dwordx2 s[32:33], s[0:1], 96")
    if opt.get("stamp"): P("s_memrealtime s[90:91]")
    P(f"s_getpc_b64 s[{S_CODE}:{S_CODE+1}]")
    P("L_k1_pc:")
    P(f"s_mov_b32 s{S_CODE+2}, L_code_end-L_k1_pc"); P(f"s_mov_b32 s{S_CODE+3}, 0x20000")
    P(f"v_lshlrev_b32 v{T}, 7, v0")
    P(f"s_mov_b32 s{S_T0}, 32768"); P(f"s_mov_b32 s{S_T1}, 65536")
    for so in ("0", f"s{S_T0}", f"s{S_T1}"):
        P(f"buffer_load_dword v{V_DUM}, v{T}, {srd(S_CODE)}, {so} offen")
    P(f"v_and_b32 v{V_LANE}, 63, v0"); P(f"v_lshrrev_b32 v{T+1}, 6, v0")
    P(f"v_readfirstlane_b32 s{S_W}, v{T+1}")
    P(f"s_and_b32 s{S_J}, s2, 7"); P(f"s_lshr_b32 s{S_TT}, s2, 3")
    P(f"s_and_b32 s{S_HH}, s{S_W}, 1"); P(f"s_lshr_b32 s{S_G}, s{S_W}, 1"); P(f"s_lshl_b32 s{S_W4K}, s{S_W}, 12")
    L = V_LANE
    P(f"v_lshrrev_b32 v{T+2}, 2, v{L}"); P(f"s_lshl_b32 s{S_T0}, s{S_W}, 4"); P(f"v_add_u32 v{T+2}, s{S_T0}, v{T+2}")
    P(f"v_mul_u32_u24 v{T+3}, 896, v{T+2}"); P(f"v_and_b32 v{T+4}, 3, v{L}"); P(f"v_lshl_add_u32 v{T+3}, v{T+4}, 4, v{T+3}")
    P("s_waitcnt lgkmcnt(0)")
    def mk_srd(b, ptr, off_s, size):
        P(f"s_add_u32 s{b}, s{ptr}, s{off_s}"); P(f"s_addc_u32 s{b+1}, s{ptr+1}, 0")
        if isinstance(size, tuple): P(f"s_sub_u32 s{b+2}, {size[1]}, s{off_s}")
        else: P(f"s_mov_b32 s{b+2}, {size}")
        P(f"s_mov_b32 s{b+3}, 0x20000")
    P(f"s_mul_i32 s{S_T0}, s{S_TT}, 57344"); mk_srd(S_X, 8, S_T0, 57344)
    xl = [P(f"buffer_load_dwordx4 {vr(V_XR+4*i,4)}, v{T+3}, {srd(S_X)}, 0 offen offset:{64*i}") for i in range(14)]
    P(f"s_lshl_b32 s{S_T0}, s{S_J}, 10"); mk_srd(S_WQ, 14, S_T0, ('sub', 448 * 8192))
    P(f"s_mul_i32 s{S_T0}, s{S_J}, 448"); mk_srd(S_W1, 20, S_T0, ('sub', 448 * 3584)); mk_srd(S_B1, 22, S_T0, 448)
    P(f"v_lshrrev_b32 v{T+5}, 3, v{L}"); P(f"v_and_b32 v{T+6}, 7, v{L}"); P(f"v_lshlrev_b32 v{T+6}, 4, v{T+6}"); P(f"v_lshrrev_b32 v{T+7}, 4, v{L}")
    P(f"s_lshl_b32 s{S_T1}, s{S_W}, 7")
    P(f"v_and_b32 v{T+8}, 1, v{T+7}"); P(f"v_lshlrev_b32 v{T+8}, 5, v{T+8}"); P(f"v_xor_b32 v{T+8}, v{T+8}, v{T+6}")
    P(f"v_xor_b32 v{T+9}, 64, v{T+8}")
    P(f"v_lshlrev_b32 v{T+10}, 13, v{T+5}"); P(f"v_add_u32 v{T+10}, s{S_T1}, v{T+10}")
    for i in range(4):
        P(f"v_add_u32 v{V_DQ+i}, v{T+10}, v{T+8+(i&1)}")
        if i: P(f"v_add_u32 v{V_DQ+i}, {i*8*8192 - i*1024}, v{V_DQ+i}")
    P(f"v_mul_u32_u24 v{T+10}, 3584, v{T+5}"); P(f"v_add_u32 v{T+10}, s{S_T1}, v{T+10}")
    P(f"s_cmp_eq_u32 s{S_W}, 3"); P(f"s_cselect_b32 s{S_T0}, 0x1000000, 0")
    for i in range(4):
        P(f"v_and_b32 v{T+11}, 64, v{T+8+(i&1)}"); P(f"v_mul_lo_u32 v{T+11}, v{T+11}, s{S_T0}")
        P(f"v_add3_u32 v{V_D1+i}, v{T+10}, v{T+8+(i&1)}, v{T+11}")
        if i: P(f"v_add_u32 v{V_D1+i}, {i*8*3584 - i*1024}, v{V_D1+i}")
    npro = len(pro_groups)
    for g in pro_groups[:3]: pro.extend(g.ins)
    P(f"v_lshlrev_b32 v{T+11}, 3, v{T+7}"); P(f"s_lshl_b32 s{S_T0}, s{S_HH}, 5"); P(f"v_add_u32 v{T+11}, s{S_T0}, v{T+11}")
    bl = [P(f"buffer_load_dwordx2 {vr(2*i,2)}, v{T+11}, {srd(S_B1)}, 0 offen offset:{64*i}") for i in range(7)]
    for g in pro_groups[3:]: pro.extend(g.ins)
    P(f"s_lshl_b32 s{S_T0}, s{S_J}, 20"); P(f"s_add_u32 s{S_T0}, s{S_T0}, {1536*512}")
    mk_srd(S_K, 10, S_T0, 262144); mk_srd(S_V, 12, S_T0, 262144)
    P(f"s_mul_i32 s{S_T0}, s{S_J}, 458752"); mk_srd(S_WO, 16, S_T0, 458752)
    P(f"s_mul_i32 s{S_T0}, s{S_J}, 200704"); mk_srd(S_W2, 24, S_T0, 200704)
    P(f"s_mul_i32 s{S_T0}, s{S_J}, {PLANE}"); mk_srd(S_WS, 32, S_T0, 9 * PLANE)
    P(f"s_mov_b32 s{S_QC}, {f32(math.log2(math.e)/16)}")
    C1 = -2 * math.log2(math.e) * math.sqrt(2 / math.pi)
    P(f"s_mov_b32 s{S_C3}, {f32(C1*0.044715)}"); P(f"v_mov_b32 v{V_C1}, {f32(C1)}")
    for r in range(4): P(f"v_mov_b32 v{V_ONE+r}, 0x3f803f80")
    P(f"v_lshlrev_b32 v{T+10}, 9, v{T+5}"); P(f"v_add_u32 v{T+10}, s{S_T1}, v{T+10}")
    P(f"v_lshlrev_b32 v{T+11}, 4, v{T+7}"); P(f"v_xor_b32 v{T+11}, v{T+11}, v{T+6}")
    for i in range(4):
        P(f"v_xad_u32 v{V_DK+i}, v{T+11}, {64*(i&1)}, v{T+10}")
        if i: P(f"v_add_u32 v{V_DK+i}, {i*8*512 - i*1024}, v{V_DK+i}")
    P(f"v_lshlrev_b32 v{T+11}, 5, v{T+7}"); P(f"v_xor_b32 v{T+11}, v{T+11}, v{T+6}")
    P(f"v_add_u32 v{V_DV}, v{T+10}, v{T+11}")
    for i in range(1, 4): P(f"v_add_u32 v{V_DV+i}, {i*8*512 - i*1024}, v{V_DV}")
    P(f"v_mul_u32_u24 v{T+10}, 896, v{T+5}"); P(f"s_mul_i32 s{S_T0}, s{S_W}, 28672"); P(f"v_add3_u32 v{V_DO}, v{T+10}, v{T+11}, s{S_T0}")
    for i in range(1, 4): P(f"v_add_u32 v{V_DO+i}, {i*8*896 - i*1024}, v{V_DO}")
    P(f"v_bfe_u32 v{T+8}, v{L}, 2, 2"); P(f"v_and_b32 v{T+9}, 3, v{L}"); P(f"v_lshlrev_b32 v{T+9}, 3, v{T+9}")
    P(f"v_and_b32 v{T+10}, 1, v{T+7}"); P(f"v_lshlrev_b32 v{T+10}, 6, v{T+10}"); P(f"v_lshrrev_b32 v{T+11}, 1, v{T+8}"); P(f"v_lshl_or_b32 v{T+10}, v{T+11}, 5, v{T+10}")
    P(f"v_lshl_or_b32 v{T+9}, v{T+8}, 7, v{T+9}"); P(f"v_or_b32 v{T+9}, v{T+9}, v{T+10}")
    P(f"v_lshl_add_u32 v{T+12}, v{T+7}, 10, v{T+9}")
    P(f"v_lshl_add_u32 v{T+13}, v{T+7}, 9, v{T+9}")
    P(f"s_lshl_b32 s{S_T0}, s{S_HH}, 14"); P(f"s_lshl_b32 s{S_T1}, s{S_HH}, 5")
    for m in range(4):
        P(f"v_xor_b32 v{RA[(('wq',m),0)]}, {m*32}, v{T+12}"); P(f"v_add_u32 v{RA[(('wq',m),0)]}, s{S_T0}, v{RA[(('wq',m),0)]}")
        P(f"v_add_u32 v{RA[(('wq',m),1)]}, 65536, v{RA[(('wq',m),0)]}")
    for m in range(2):
        P(f"v_xor_b32 v{RA[(('w1',m),0)]}, {m*64}, v{T+12}"); P(f"v_xor_b32 v{RA[(('w1',m),0)]}, s{S_T1}, v{RA[(('w1',m),0)]}")
        P(f"v_add_u32 v{RA[(('w1',m),1)]}, 65536, v{RA[(('w1',m),0)]}"); P(f"v_add_u32 v{RA[(('w1',m),2)]}, 131072, v{RA[(('w1',m),0)]}")
    P(f"v_lshlrev_b32 v{V_RL0}, 9, v{T+7}"); P(f"v_add_u32 v{V_RL0}, s{S_T0}, v{V_RL0}")
    P(f"s_lshl_b32 s{S_T1}, s{S_HH}, 6"); P(f"v_xor_b32 v{V_RL1}, s{S_T1}, v{T+13}")
    P(f"v_and_b32 v{T+8}, 15, v{L}"); P(f"v_lshrrev_b32 v{T+9}, 1, v{T+8}"); P(f"v_xor_b32 v{T+9}, v{T+9}, v{T+7}"); P(f"v_lshlrev_b32 v{T+9}, 4, v{T+9}")
    P(f"v_lshl_or_b32 v{RA[(('k',0),0)]}, v{T+8}, 7, v{T+9}"); P(f"v_xor_b32 v{RA[(('k',1),0)]}, 64, v{RA[(('k',0),0)]}")
    for m in range(2): P(f"v_add_u32 v{RA[(('k',m),1)]}, 65536, v{RA[(('k',m),0)]}")
    P(f"v_lshrrev_b32 v{T+9}, 2, v{T+8}"); P(f"v_sub_u32 v{T+9}, 0, v{T+9}"); P(f"v_and_b32 v{T+9}, 3, v{T+9}"); P(f"v_xor_b32 v{T+9}, v{T+9}, v{T+7}")
    P(f"v_lshlrev_b32 v{T+9}, 4, v{T+9}"); P(f"v_lshl_or_b32 v{T+9}, v{T+8}, 6, v{T+9}")
    P(f"s_lshl_b32 s{S_T0}, s{S_G}, 11"); P(f"s_add_u32 s{S_T0}, s{S_T0}, {SCR_A}"); P(f"v_add_u32 v{V_XRD}, s{S_T0}, v{T+9}")
    P(f"v_sub_u32 v{T+9}, 0, v{T+7}"); P(f"v_and_b32 v{T+9}, 3, v{T+9}"); P(f"v_xor_b32 v{T+9}, v{T+9}, v{T+4}"); P(f"v_lshlrev_b32 v{T+9}, 4, v{T+9}")
    P(f"v_lshl_or_b32 v{T+9}, v{T+2}, 6, v{T+9}"); P(f"v_add_u32 v{V_XW}, {SCR_A}, v{T+9}")
    P(f"v_lshlrev_b32 v{T+9}, 4, v{L}")
    P(f"s_lshl_b32 s{S_T0}, s{S_G}, 10"); P(f"s_add_u32 s{S_T0}, s{S_T0}, {SCR_A}"); P(f"v_add_u32 v{V_HR}, s{S_T0}, v{T+9}")
    P(f"s_lshl_b32 s{S_T0}, s{S_HH}, 3"); P(f"v_add_u32 v{V_HW}, s{S_T0}, v{V_HR}")
    P(f"s_add_u32 s{S_T0}, s{S_W4K}, {SCR_B}"); P(f"v_add_u32 v{V_OW}, s{S_T0}, v{T+9}")
    P(f"s_lshl_b32 s{S_T0}, s{S_G}, 13"); P(f"s_add_u32 s{S_T0}, s{S_T0}, {SCR_B}"); P(f"v_add_u32 v{V_OR}, s{S_T0}, v{T+9}")
    P(f"s_lshl_b32 s{S_T0}, s{S_TT}, 2"); P(f"s_add_u32 s{S_T0}, s{S_T0}, s{S_W}"); P(f"s_mul_i32 s{S_T0}, s{S_T0}, 14336"); P(f"v_add_u32 v{V_ST}, s{S_T0}, v{T+9}")
    PF = 120
    P(f"s_lshl_b32 s{S_T1}, s{S_TT}, 2"); P(f"s_add_u32 s{S_T1}, s{S_T1}, s{S_W}")
    def pf_lin(dst, n):
        P(f"s_mul_i32 s{S_T0}, s{S_T1}, {n}"); P(f"v_add_u32 v{dst}, s{S_T0}, v{L}"); P(f"v_lshlrev_b32 v{dst}, 7, v{dst}")
        P(f"v_cmp_gt_u32 vcc, {n}, v{L}"); P(f"v_cndmask_b32 v{dst}, v{T+14}, v{dst}, vcc")
    P(f"v_mov_b32 v{T+14}, 0x7f000000")
    pf_lin(PF + 0, 28)
    P(f"v_and_b32 v{T+9}, 0x380, v{PF}"); P(f"v_and_b32 v{T+10}, 0xfffffc00, v{PF}"); P(f"v_lshl_add_u32 v{T+10}, v{T+10}, 3, v{T+9}")
    P(f"v_cndmask_b32 v{PF}, v{T+14}, v{T+10}, vcc")
    pf_lin(PF + 1, 14)
    P(f"v_and_b32 v{T+9}, 0x180, v{PF+1}"); P(f"v_lshrrev_b32 v{T+10}, 9, v{PF+1}"); P(f"v_mul_u32_u24 v{T+10}, 3584, v{T+10}"); P(f"v_add_u32 v{T+10}, v{T+10}, v{T+9}")
    P(f"v_cndmask_b32 v{PF+1}, v{T+14}, v{T+10}, vcc")
    pf_lin(PF + 2, 16)
    pf_lin(PF + 3, 28)
    pf_lin(PF + 4, 13)
    pro.append(wait_vm(bl[-1]))
    for i in range(7):
        P(f"v_lshlrev_b32 v{T+8}, 16, v{2*i}"); P(f"v_and_b32 v{T+9}, 0xffff0000, v{2*i}")
        P(f"v_lshlrev_b32 v{T+10}, 16, v{2*i+1}"); P(f"v_and_b32 v{T+11}, 0xffff0000, v{2*i+1}")
        for tg in range(2):
            for r in range(4): P(f"v_accvgpr_write_b32 a{A_H + (i*2+tg)*4 + r}, v{T+8+r}")
    if opt.get("l2pf", 1):
        pro.append(l2pf(S_WQ, PF)); pro.append(l2pf(S_W1, PF + 1))
        pf2 = [l2pf(S_K, PF + 2), l2pf(S_V, PF + 2), l2pf(S_WO, PF + 3), l2pf(S_W2, PF + 4)]
        for n, i in enumerate(pf2): steps[2 + 3 * n].must.append(i)
    for a in range(4): P(f"v_mov_b32 v{T+8+a}, 0")
    for dw in range(56):
        P(f"v_dot2_f32_bf16 v{T+8+(dw&1)}, v{V_XR+dw}, v{V_ONE}, v{T+8+(dw&1)}")
        P(f"v_dot2_f32_bf16 v{T+10+(dw&1)}, v{V_XR+dw}, v{V_XR+dw}, v{T+10+(dw&1)}")
    P(f"v_add_f32 v{T+8}, v{T+8}, v{T+9}"); P(f"v_add_f32 v{T+10}, v{T+10}, v{T+11}")
    for qp in ("[1,0,3,2]", "[2,3,0,1]"):
        P(f"v_add_f32_dpp v{T+8}, v{T+8}, v{T+8} quad_perm:{qp} row_mask:0xf bank_mask:0xf")
        P(f"v_add_f32_dpp v{T+10}, v{T+10}, v{T+10} quad_perm:{qp} row_mask:0xf bank_mask:0xf")
    P(f"v_mul_f32 v{T+8}, {f32(1/448)}, v{T+8}"); P(f"v_mul_f32 v{T+10}, {f32(1/448)}, v{T+10}")
    P(f"v_fma_f32 v{T+10}, -v{T+8}, v{T+8}, v{T+10}"); P(f"v_max_f32 v{T+10}, 0, v{T+10}"); P(f"v_add_f32 v{T+10}, {f32(1e-5)}, v{T+10}")
    P(f"v_rsq_f32 v{V_RSTD}, v{T+10}"); P(f"v_mul_f32 v{V_NB}, v{T+8}, v{V_RSTD}"); P(f"v_sub_f32 v{V_NB}, 0, v{V_NB}")
    pro.extend(ln_piece(0))
    pro.append(wait_lgkm(xw_ins[0])); pro.append(wait_vm(cert_at.get(-1, [])))
    P("s_barrier")
    rd0 = xb_reads(0); pro.extend(rd0); steps[0].needs += rd0

    for st in steps: st.reads = sum([make_reads(r) for r in st.reads], [])
    for si in range(D): pro.extend(steps[si].reads)
    S = []
    for (lst, e, dl) in streams:
        for i in lst:
            if i.earliest is None: i.earliest = e
            if i.deadline is None: i.deadline = dl + 1
        S.append(list(lst))
    CAP = opt.get("cap", 4)
    seq = list(pro)
    barset = set(barriers)
    loads = []
    for si, st in enumerate(steps):
        toks = list(st.needs)
        if st.reads: toks.append(st.reads[-1])
        if si % 2 == 0 and si + 1 < nsteps and steps[si + 1].reads: toks.append(steps[si + 1].reads[-1])
        if toks: seq.append(wait_lgkm(toks))
        F = []
        if si + D < nsteps: F += steps[si + D].reads
        F += st.must
        load = sum(i.cost for i in F) + (2 if si in barset else 0) + 0.5
        def take(q):
            i = q.pop(0); F.append(i); return i.cost
        act = [q for q in S if q and q[0].earliest <= si]
        for q in act:
            dl = None
            n_now = 0; cum = 0
            for k, i in enumerate(q):
                if i.earliest > si: break
                left = i.deadline - si
                assert left >= 1, f"missed deadline {i.text} at step {si}"
                need = math.ceil((k + 1) / left) if left > 1 else k + 1
                if left == 1 or opt.get("even", 1): n_now = max(n_now, need if left > 1 and (k + 1) / left >= 1 else (k + 1 if left == 1 else 0))
            for _ in range(n_now):
                if q and q[0].earliest <= si: load += take(q)
        while load < CAP:
            act = [q for q in S if q and q[0].earliest <= si and load + q[0].cost <= CAP + 0.5]
            if not act: break
            q = min(act, key=lambda q: q[0].deadline)
            load += take(q)
        loads.append(load)
        tot = sum(i.cost for i in F) + (2 if si in barset else 0)
        g1 = []; c = 0
        while F and c + F[0].cost <= (tot + 1) // 2:
            c += F[0].cost; g1.append(F.pop(0))
        seq.append(st.mf[0]); seq += g1; seq.append(st.mf[1]); seq += F
        if si in barset:
            if bar_extra.get(si): seq.append(wait_lgkm(bar_extra[si]))
            if cert_at.get(si): seq.append(wait_vm(cert_at[si]))
            seq.append(Ins("s_barrier"))
        if opt.get("stamp") and si in opt["stamp"](locals()):
            pass
    assert all(not q for q in S), [q[0].text for q in S if q]
    seq += tail
    if opt.get("stamp"):
        seq.append(Ins("s_waitcnt vmcnt(0)"))
        seq.append(Ins("s_memrealtime s[92:93]")); seq.append(Ins("s_waitcnt lgkmcnt(0)"))
        seq += [Ins(f"v_mov_b32 v0, s90"), Ins("v_mov_b32 v1, s92"), Ins(f"s_lshl_b32 s{S_T0}, s2, 5"), Ins(f"s_lshl_b32 s{S_T1}, s{S_W}, 3"),
                Ins(f"s_add_u32 s{S_T0}, s{S_T0}, s{S_T1}"), Ins(f"s_add_u32 s94, s32, {64<<20}"), Ins("s_addc_u32 s95, s33, 0"),
                Ins("s_mov_b32 s96, s94"), Ins("s_mov_b32 s97, s95"), Ins("s_mov_b32 s98, 65536"), Ins("s_mov_b32 s99, 0x20000"),
                Ins(f"v_mov_b32 v2, s{S_T0}"), Ins("buffer_store_dwordx2 v[0:1], v2, s[96:99], 0 offen")]
    seq.append(Ins("L_k1_end:")); seq.append(Ins("s_endpgm"))
    seq = resolve_waits(seq)
    check_data_waits([i for i in seq if not (i.wr == [('v', V_DUM)])])
    verify_lds(seq)
    seq = pad_hazards(seq)
    if opt.get("log"):
        def avg(a, b): return sum(loads[a:b]) / (b - a)
        print("avg load p1 %.2f p2 %.2f ffn2 %.2f oproj %.2f" % (avg(0, p2_start), avg(p2_start, p3_start), avg(p3_start, o_first[0]), avg(o_first[0], nsteps)))
        print("n instr", len(seq), "nops", sum(1 for i in seq if i.note == 'hz'), "waits", sum(1 for i in seq if i.op == 's_waitcnt'), "barriers", sum(1 for i in seq if i.op == 's_barrier'))
    return seq

def gen_k2(opt):
    q = []
    P = lambda t, **k: (q.append(Ins(t, **k)), q[-1])[1]
    P("s_cmp_ge_u32 s2, 448"); P("s_cbranch_scc1 L_k2_end")
    P("s_load_dwordx2 s[4:5], s[0:1], 96"); P("s_load_dwordx2 s[6:7], s[0:1], 0"); P("s_load_dwordx4 s[8:11], s[0:1], 72")
    P("s_lshl_b32 s3, s2, 12"); P("v_lshlrev_b32 v1, 4, v0"); P("v_add_u32 v1, s3, v1")
    P("v_lshrrev_b32 v2, 6, v0"); P("v_readfirstlane_b32 s30, v2")
    P("s_waitcnt lgkmcnt(0)")
    P("s_mov_b32 s12, s4"); P("s_mov_b32 s13, s5"); P(f"s_mov_b32 s14, {16*PLANE}"); P("s_mov_b32 s15, 0x20000")
    order = list(range(8, 16)) + list(range(8))
    ld = {}
    for p in order:
        P(f"s_mov_b32 s{40+p}, {p*PLANE}")
        ld[p] = P(f"buffer_load_dwordx4 v[{16+4*p}:{19+4*p}], v1, s[12:15], s{40+p} offen")
        if p == 15:
            P("s_lshl_b32 s31, s2, 2"); P("s_add_u32 s31, s31, s30")
            P("s_and_b32 s32, s31, 1"); P("s_lshr_b32 s33, s31, 1")
            P(f"s_mul_hi_u32 s34, s33, {(2**32 + 6)//7}"); P("s_mul_i32 s35, s34, 7"); P("s_sub_u32 s35, s33, s35")
            P("s_and_b32 s36, s34, 1"); P("s_lshr_b32 s37, s34, 1")
            P("s_lshl_b32 s37, s37, 5"); P("s_lshl_b32 s32, s32, 4"); P("s_add_u32 s37, s37, s32")
            P("s_lshl_b32 s35, s35, 7"); P("s_lshl_b32 s36, s36, 6"); P("s_add_u32 s35, s35, s36")
            P("v_and_b32 v3, 15, v0"); P("v_add_u32 v3, s37, v3"); P("v_mul_u32_u24 v3, 896, v3")
            P("v_bfe_u32 v4, v0, 4, 2"); P("v_lshlrev_b32 v4, 3, v4"); P("v_add_u32 v4, s35, v4"); P("v_add_u32 v3, v3, v4")
            P("s_mov_b32 s16, s6"); P("s_mov_b32 s17, s7"); P(f"s_mov_b32 s18, {PLANE}"); P("s_mov_b32 s19, 0x20000")
            P("s_mov_b32 s20, s8"); P("s_mov_b32 s21, s9"); P("s_mov_b32 s22, 896"); P("s_mov_b32 s23, 0x20000")
            P("s_mov_b32 s24, s10"); P("s_mov_b32 s25, s11"); P(f"s_mov_b32 s26, {PLANE}"); P("s_mov_b32 s27, 0x20000")
            b2a = P("buffer_load_dwordx2 v[8:9], v4, s[20:23], 0 offen"); b2b = P("buffer_load_dwordx2 v[10:11], v4, s[20:23], 0 offen offset:32")
            xa = P("buffer_load_dwordx2 v[12:13], v3, s[16:19], 0 offen"); xb = P("buffer_load_dwordx2 v[14:15], v3, s[16:19], 0 offen offset:32")
    P("s_mov_b32 s28, 0x3f80"); P("s_mov_b32 s29, 0x3f800000")
    B = 80; Sx = 88
    def accum(dst, src, first):
        for dw in range(4):
            for h in range(2):
                P(f"v_dot2_f32_bf16 v{dst+dw*2+h}, v{src+dw}, s{28+h}, {'0' if first else 'v%d' % (dst+dw*2+h)}")
    for n, p in enumerate(range(8, 16)):
        q.append(wait_vm(ld[p])); accum(B, 16 + 4 * p, n == 0)
    q.append(wait_vm(b2b)); accum(B, 8, False)
    G = 96
    for e in range(8): P(f"v_mul_f32 v{G+e}, {f32(-math.log2(math.e))}, v{B+e}")
    for e in range(8): P(f"v_exp_f32 v{G+e}, v{G+e}")
    for e in range(8): P(f"v_add_f32 v{G+e}, 1.0, v{G+e}")
    for e in range(8): P(f"v_rcp_f32 v{G+e}, v{G+e}")
    for e in range(8): P(f"v_mul_f32 v{G+e}, v{G+e}, v{B+e}")
    for n, p in enumerate(range(8)):
        q.append(wait_vm(ld[p])); accum(Sx, 16 + 4 * p, n == 0)
    for e in range(8): P(f"v_mul_f32 v{Sx+e}, v{Sx+e}, v{G+e}")
    accum(Sx, 12, False)
    for dw in range(4): P(f"v_cvt_pk_bf16_f32 v{4+dw}, v{Sx+2*dw}, v{Sx+2*dw+1}")
    P("buffer_store_dwordx2 v[4:5], v3, s[24:27], 0 offen"); P("buffer_store_dwordx2 v[6:7], v3, s[24:27], 0 offen offset:32")
    P("L_k2_end:"); P("s_endpgm")
    q = resolve_waits(q); check_data_waits(q); q = pad_hazards(q)
    return q

def kd(name, vg, acc):
    return f""".amdhsa_kernel {name}
  .amdhsa_next_free_vgpr {vg}
  .amdhsa_next_free_sgpr 102
  .amdhsa_accum_offset {acc}
  .amdhsa_group_segment_fixed_size 0
  .amdhsa_kernarg_size 104
  .amdhsa_user_sgpr_count 2
  .amdhsa_user_sgpr_kernarg_segment_ptr 1
  .amdhsa_system_sgpr_workgroup_id_x 1
.end_amdhsa_kernel
"""
def build(opt):
    ref = open(f"cdna_kernels/{NAME}.s.ref").read().split("\n")
    hdr = [l for l in ref[:16] if l.startswith(";") and "@launch" not in l and "Override" not in l and "grid=ceil" not in l]
    out = hdr + ["; @launch kernel=fused_attn_ffn_kernel grid=(256,1,1) block=(256,1,1) lds=163840",
                 "; @launch kernel=reduce_gate_kernel grid=(448,1,1) block=(256,1,1) lds=0",
                 '.amdgcn_target "amdgcn-amd-amdhsa--gfx950"', ".text"]
    for nm, seq in (("fused_attn_ffn_kernel", gen_k1(opt)), ("reduce_gate_kernel", gen_k2(opt))):
        out += [f".globl {nm}", ".p2align 8", f".type {nm},@function", f"{nm}:"]
        out += [(i.text if i.label else "    " + i.text) for i in seq]
    out += ["L_code_end:", '.section .rodata,"a"', ".p2align 6", kd("fused_attn_ffn_kernel", 512, 256), ".p2align 6", kd("reduce_gate_kernel", 104, 104)]
    return "\n".join(out) + "\n"

if __name__ == "__main__":
    opt = dict(log=1)
    txt = build(opt)
    open(sys.argv[1] if len(sys.argv) > 1 else f"cdna_kernels/{NAME}.s", "w").write(txt)
```

```python
import sys, math, struct
from asmlib import *

NAME = "recurrent_scan__sliding_block_cached__dense_activation_gelu__prompt"
PLANE = 2048 * 448 * 2
def f32(x): return "0x%08x" % struct.unpack("<I", struct.pack("<f", x))[0]

S_X, S_WQ, S_W1, S_K, S_V, S_WO, S_W2, S_WS, S_B1, S_CODE = 36, 40, 44, 48, 52, 56, 60, 64, 68, 72
S_W, S_HH, S_G, S_J, S_TT, S_W4K, S_SOFF, S_STO, S_QC, S_C3, S_T0, S_T1, S_BAD = 76, 77, 78, 79, 80, 81, 82, 83, 84, 85, 86, 87, 88
def srd(b): return f"s[{b}:{b+3}]"
V_ACC = 0
V_XR = 128
V_S = 128
V_P = 160
V_L = 168
V_NM = 176
V_ONE = 184
V_T = 188
V_DQ, V_D1, V_DK, V_DV, V_DO = 204, 208, 212, 216, 220
V_RA = 224
V_XW0, V_XRD, V_HW, V_HR, V_OW, V_OR, V_ST, V_RSTD0, V_NB0, V_C1, V_RL0, V_RL1, V_LANE, V_DUM = range(242, 256)
V_XW = [V_XW0, V_T + 12]; V_RSTD = [V_RSTD0, V_T + 13]; V_NB = [V_NB0, V_T + 14]
A_RING, A_XB, A_H, A_Q = 0, 32, 48, 104
def a_of(kap, tg):
    idx = kap * 2 + tg
    if idx < 22: return 168 + 4 * idx
    if idx < 26: return 32 + 4 * (idx - 22)
    return 104 + 4 * (idx - 26)
SLOT = 16384
SCR_A, SCR_B = 9 * SLOT, 8 * SLOT
D = 6

def vr(b, n): return f"v[{b}:{b+n-1}]"
def ar(b, n): return f"a[{b}:{b+n-1}]"
MF = "v_mfma_f32_16x16x32_bf16"

class Step:
    def __init__(s, mf, reads=(), needs=(), group=None, name=""):
        s.mf = mf; s.reads = list(reads); s.needs = list(needs); s.group = group; s.name = name
        s.must = []
        s.fill = []

class Group:
    def __init__(g, kind, srdb, vo, soff, slot=None, tag=None):
        g.kind = kind; g.srdb = srdb; g.vo = vo; g.soff = soff; g.slot = slot; g.tag = tag
        g.first_read = None; g.last_use = None; g.ins = None

def gen_k1(opt):
    dbg = opt.get("dbg", 0)
    pro = []
    P = lambda t, **k: (pro.append(Ins(t, **k)), pro[-1])[1]
    steps = []; groups = []; barriers = []; streams = []
    fr = [0]
    def frag():
        b = A_RING + 4 * (fr[0] % 8); fr[0] += 1; return b

    def lds_r(rs, tag, **k): return dict(rw='r', ranges=rs, tag=tag, **k)
    def lds_w(rs, tag, **k): return dict(rw='w', ranges=rs, tag=tag, **k)

    class Rd:
        def __init__(r, kind, dst, grps, pat, off, half_off):
            r.kind = kind; r.dst = dst; r.grps = grps; r.pat = pat; r.off = off; r.half_off = half_off
    RA = {}
    def ra(pat, region): return RA[(pat, region)]
    def make_reads(r):
        g0 = r.grps[0]
        base = g0.slot * SLOT + r.off
        region = base // 65536; imm = base % 65536
        rs = [(g.slot * SLOT + (r.off // 4096) * 4096, g.slot * SLOT + (r.off // 4096) * 4096 + 4096) for g in r.grps]
        outl = []
        if len(r.grps) == 2: assert r.grps[1].slot == g0.slot + 1
        def tagged(text):
            i = Ins(text); i.lds = lds_r(rs[:1], g0.tag)
            return i
        if r.kind == 'tr':
            assert imm + r.half_off < 65536
            a = tagged(f"ds_read_b64_tr_b16 {ar(r.dst,2)}, v{ra(r.pat, region)} offset:{imm}")
            b = tagged(f"ds_read_b64_tr_b16 {ar(r.dst+2,2)}, v{ra(r.pat, region)} offset:{imm + r.half_off}")
            outl = [a, b]
        else:
            outl = [tagged(f"ds_read_b128 {ar(r.dst,4)}, v{ra(r.pat, region)} offset:{imm}")]
        if len(r.grps) == 2:
            for i in outl: i.lds['ranges'] = rs
        return outl

    xw_ins = {}; xb_ins = {}
    p1_first = []
    for ks in range(14):
        sl = 3 * (ks % 3)
        gq0 = Group('wq', S_WQ, V_DQ, ks * 32 * 8192, slot=sl, tag=('wq', ks))
        gq1 = Group('wq', S_WQ, V_DQ, ks * 32 * 8192 + 512, slot=sl + 1, tag=('wq', ks))
        g1 = Group('w1', S_W1, V_D1, ks * 32 * 3584, slot=sl + 2, tag=('w1', ks))
        groups += [gq0, gq1, g1]
        p1_first.append(len(steps))
        xb = [A_XB + (ks % 2) * 8 + tg * 4 for tg in range(2)]
        for mb in range(16):
            f = frag()
            mfs = []
            for tg in range(2):
                acc = V_ACC + (mb * 2 + tg) * 4
                c = "0" if ks == 0 else vr(acc, 4)
                mfs.append(Ins(f"{MF} {vr(acc,4)}, {ar(f,4)}, {ar(xb[tg],4)}, {c}"))
            steps.append(Step(mfs, [Rd('tr', f, [gq0, gq1], ('wq', mb % 4), (mb // 4) * 4096, 512)], group=[gq0, gq1], name=f"q{ks}.{mb}"))
        for i in range(7):
            f = frag()
            mfs = []
            for tg in range(2):
                acc = A_H + (i * 2 + tg) * 4
                mfs.append(Ins(f"{MF} {ar(acc,4)}, {ar(f,4)}, {ar(xb[tg],4)}, {ar(acc,4)}"))
            steps.append(Step(mfs, [Rd('tr', f, [g1], ('w1', i % 2), (i // 2) * 4096, 512)], group=[g1], name=f"h{ks}.{i}"))
    p2_start = len(steps)
    p1_first.append(p2_start)
    for ks in range(14): barriers.append(p1_first[ks + 1] - D - 1)

    def ln_piece(n):
        st = []
        t = V_T
        ws_ = []
        base = SCR_A + (n % 2) * 8192
        for h in range(2):
            for dw in range(4):
                x = V_XR + (h * 7 + n) * 4 + dw
                st.append(Ins(f"v_lshlrev_b32 v{t+(dw%2)*2}, 16, v{x}"))
                st.append(Ins(f"v_and_b32 v{t+(dw%2)*2+1}, 0xffff0000, v{x}"))
                st.append(Ins(f"v_fma_f32 v{t+(dw%2)*2}, v{t+(dw%2)*2}, v{V_RSTD[h]}, v{V_NB[h]}"))
                st.append(Ins(f"v_fma_f32 v{t+(dw%2)*2+1}, v{t+(dw%2)*2+1}, v{V_RSTD[h]}, v{V_NB[h]}"))
                st.append(Ins(f"v_cvt_pk_bf16_f32 v{x}, v{t+(dw%2)*2}, v{t+(dw%2)*2+1}"))
            w = Ins(f"ds_write_b128 v{V_XW[h]}, {vr(V_XR + (h*7+n)*4, 4)} offset:{(n%2)*8192}", lds=lds_w([(base, base + 8192)], ('xn', n)))
            st.append(w); ws_.append(w)
        xw_ins[n] = ws_
        return st
    def xb_reads(p):
        n = p // 2
        base = SCR_A + (n % 2) * 8192
        l = [Ins(f"ds_read_b128 {ar(A_XB + (p%2)*8 + tg*4, 4)}, v{V_XRD} offset:{(n%2)*8192 + (p%2)*4096 + tg*1024}", lds=lds_r([(base, base + 8192)], ('xn', n))) for tg in range(2)]
        xb_ins[p] = l
        return l
    bar_extra = {}
    for n in range(1, 7):
        e = 0 if n == 1 else barriers[2 * n - 3] + 1
        st = ln_piece(n)
        streams.append((st, e, barriers[2 * n - 1] - 1))
        bar_extra.setdefault(barriers[2 * n - 1], []).extend(xw_ins[n])
    for p in range(1, 14):
        rd = xb_reads(p)
        steps[barriers[p - 1] + 1].must += rd
        steps[p1_first[p]].needs += rd

    gK = [Group('k', S_K, V_DK, j * 16384, tag=('k', j)) for j in range(16)]
    gV = [Group('v', S_V, V_DV, j * 16384, tag=('v', j)) for j in range(16)]
    s_first = {}; s_end = {}; pv_first = {}; pv_end = {}
    def s_steps(j):
        s_first[j] = len(steps)
        groups.append(gK[j])
        for kk in range(8):
            for kb in range(2):
                f = frag(); mfs = []
                for tg in range(2):
                    acc = V_S + (j % 2) * 16 + (kb * 2 + tg) * 4
                    c = vr(acc, 4) if kk else ("0" if j < 2 else vr(V_NM + tg * 4, 4))
                    mfs.append(Ins(f"{MF} {vr(acc,4)}, {ar(f,4)}, {ar(A_Q + (kk*2+tg)*4, 4)}, {c}"))
                steps.append(Step(mfs, [Rd('b128', f, [gK[j]], ('k', kk % 2), (kk // 2) * 4096 + kb * 2048, 0)], group=[gK[j]], name=f"s{j}.{kk}.{kb}"))
        s_end[j] = len(steps)
    def pbuf(j): return V_P if j < 15 else V_S
    def pv_steps(j):
        V_P = pbuf(j)
        pv_first[j] = len(steps)
        groups.append(gV[j])
        for db in range(16):
            f = frag(); mfs = []
            for tg in range(2):
                acc = V_ACC + (db * 2 + tg) * 4
                c = vr(acc, 4) if j else "0"
                mfs.append(Ins(f"{MF} {vr(acc,4)}, {ar(f,4)}, {vr(V_P + tg*4, 4)}, {c}"))
            steps.append(Step(mfs, [Rd('tr', f, [gV[j]], ('v', db % 4), (db // 4) * 4096, 2048)], group=[gV[j]], name=f"pv{j}.{db}"))
        mfs = [Ins(f"{MF} {vr(V_L+tg*4,4)}, {vr(V_ONE,4)}, {vr(V_P + tg*4, 4)}, {vr(V_L+tg*4,4) if j else '0'}") for tg in range(2)]
        steps.append(Step(mfs, name=f"rs{j}"))
        pv_end[j] = len(steps)
    s_steps(0)
    for j in range(16):
        if j < 15: s_steps(j + 1)
        pv_steps(j)
    p3_start = len(steps)
    barriers.append(s_first[1] - D - 1)
    p2bar = {}
    for j in range(16):
        p2bar[j] = pv_end[j] - D - 1
        barriers.append(p2bar[j])

    q13 = p1_first[13]
    qfin = []
    for kk in range(8):
        for tg in range(2):
            t = V_T + ((kk * 2 + tg) % 2) * 4
            st = []
            a0 = V_ACC + ((2 * kk) * 2 + tg) * 4; a1 = V_ACC + ((2 * kk + 1) * 2 + tg) * 4
            for r in range(4): st.append(Ins(f"v_mul_f32 v{a0+r}, s{S_QC}, v{a0+r}"))
            for r in range(4): st.append(Ins(f"v_mul_f32 v{a1+r}, s{S_QC}, v{a1+r}"))
            st.append(Ins(f"v_cvt_pk_bf16_f32 v{t}, v{a0}, v{a0+1}")); st.append(Ins(f"v_cvt_pk_bf16_f32 v{t+1}, v{a0+2}, v{a0+3}"))
            st.append(Ins(f"v_cvt_pk_bf16_f32 v{t+2}, v{a1}, v{a1+1}")); st.append(Ins(f"v_cvt_pk_bf16_f32 v{t+3}, v{a1+2}, v{a1+3}"))
            st2 = [Ins(f"v_permlane32_swap_b32 v{t}, v{t+2}"), Ins(f"v_permlane32_swap_b32 v{t+1}, v{t+3}")]
            st3 = [Ins(f"v_permlane16_swap_b32 v{t}, v{t+2}"), Ins(f"v_permlane16_swap_b32 v{t+1}, v{t+3}")]
            st4 = [Ins(f"v_accvgpr_write_b32 a{A_Q + (kk*2+tg)*4 + r}, v{t+r}") for r in range(4)]
            for i in st + st2 + st3 + st4:
                i.earliest = q13 + 2 * kk + 2; i.deadline = s_first[0] + 2 * kk
            qfin.append((st, st2, st3, st4))
    qs = []
    for kk in range(8):
        A, B = qfin[2 * kk], qfin[2 * kk + 1]
        qs += A[0] + B[0][:2] + A[1] + B[0][2:4] + A[2] + B[0][4:6] + A[3] + B[0][6:]
        nxt = []
        qs += [Ins("s_nop 1")] if False else []
        qs += B[1]; qs += B[2]; qs += B[3]
    streams.append((qs, None, None))

    for j in range(16):
        sb = V_S + (j % 2) * 16
        ex = []
        if j == 0:
            for tg in range(2):
                v = [sb + (kb * 2 + tg) * 4 + r for kb in range(2) for r in range(4)]
                m = V_T + 8 + tg * 2
                ex += [Ins(f"v_max3_f32 v{m}, v{v[0]}, v{v[1]}, v{v[2]}"), Ins(f"v_max3_f32 v{m}, v{m}, v{v[3]}, v{v[4]}"),
                       Ins(f"v_max3_f32 v{m}, v{m}, v{v[5]}, v{v[6]}"), Ins(f"v_max_f32 v{m}, v{m}, v{v[7]}")]
            for sw in ("v_permlane32_swap_b32", "v_permlane16_swap_b32"):
                for tg in range(2): ex.append(Ins(f"v_mov_b32 v{V_T+8+tg*2+1}, v{V_T+8+tg*2}"))
                for tg in range(2): ex.append(Ins(f"{sw} v{V_T+8+tg*2}, v{V_T+8+tg*2+1}"))
                for tg in range(2): ex.append(Ins(f"v_max_f32 v{V_T+8+tg*2}, v{V_T+8+tg*2}, v{V_T+8+tg*2+1}"))
            for tg in range(2):
                for r in range(4): ex.append(Ins(f"v_sub_f32 v{V_NM+tg*4+r}, {f32(-opt.get('moff', 32.0))}, v{V_T+8+tg*2}"))
        if j < 2:
            for kb in range(2):
                for tg in range(2):
                    for r in range(4):
                        x = sb + (kb * 2 + tg) * 4 + r
                        ex.append(Ins(f"v_add_f32 v{x}, v{x}, v{V_NM+tg*4}"))
        for kb in range(2):
            for tg in range(2):
                for r in range(4):
                    x = sb + (kb * 2 + tg) * 4 + r
                    ex.append(Ins(f"v_exp_f32 v{x}, v{x}"))
        cv = []
        for tg in range(2):
            for kb in range(2):
                x = sb + (kb * 2 + tg) * 4
                cv.append(Ins(f"v_cvt_pk_bf16_f32 v{pbuf(j)+tg*4+kb*2}, v{x}, v{x+1}"))
                cv.append(Ins(f"v_cvt_pk_bf16_f32 v{pbuf(j)+tg*4+kb*2+1}, v{x+2}, v{x+3}"))
        e0 = s_end[j] if j != 1 else max(s_end[1], pv_first[0])
        for i in ex: i.earliest = e0; i.deadline = pv_first[j]
        for i in cv: i.earliest = (pv_end[j - 1] if j < 15 else pv_first[14]) if j else s_end[0]; i.deadline = pv_first[j]
        streams.append((ex + cv, None, None))
    for u in range(14):
        j = u + 1
        a = A_H + u * 4; h = V_T + 8; w = V_T + 12
        st = []
        for r in range(4): st.append(Ins(f"v_accvgpr_read_b32 v{h+r}, a{a+r}"))
        for r in range(4): st.append(Ins(f"v_mul_f32 v{w+r}, v{h+r}, v{h+r}"))
        for r in range(4): st.append(Ins(f"v_fma_f32 v{w+r}, v{w+r}, s{S_C3}, v{V_C1}"))
        for r in range(4): st.append(Ins(f"v_mul_f32 v{w+r}, v{w+r}, v{h+r}"))
        for r in range(4): st.append(Ins(f"v_exp_f32 v{w+r}, v{w+r}"))
        for r in range(4): st.append(Ins(f"v_add_f32 v{w+r}, 1.0, v{w+r}"))
        for r in range(4): st.append(Ins(f"v_rcp_f32 v{w+r}, v{w+r}"))
        for r in range(4): st.append(Ins(f"v_mul_f32 v{h+r}, v{h+r}, v{w+r}"))
        st.append(Ins(f"v_cvt_pk_bf16_f32 v{w}, v{h}, v{h+1}")); st.append(Ins(f"v_cvt_pk_bf16_f32 v{w+1}, v{h+2}, v{h+3}"))
        base = SCR_A + (u % 2) * 2048
        wr = Ins(f"ds_write_b64 v{V_HW}, {vr(w,2)} offset:{(u%2)*2048}", lds=lds_w([(base, base + 2048)], ('h', u)))
        st.append(wr)
        streams.append((st, p2bar[j - 1] + 1, p2bar[j] - 1))
        bar_extra.setdefault(p2bar[j], []).append(wr)
        rd = Ins(f"ds_read_b128 {ar(a,4)}, v{V_HR} offset:{(u%2)*2048}", lds=lds_r([(base, base + 2048)], ('h', u)))
        steps[p2bar[j] + 1].must.append(rd)
        bar_extra.setdefault(p2bar[j + 1] if j + 1 < 16 else None, []).append(rd)
    bar_extra.pop(None, None)

    store_flags = opt.get("store_flags", "")
    def epilogue(accb, seg, plane_off, e, dl):
        st = []
        t = V_P
        for tg in range(2):
            for tt_ in range(2):
                x = accb + (tt_ * 2 + tg) * 4
                st.append(Ins(f"v_cvt_pk_bf16_f32 v{t+tg*4+tt_*2}, v{x}, v{x+1}"))
                st.append(Ins(f"v_cvt_pk_bf16_f32 v{t+tg*4+tt_*2+1}, v{x+2}, v{x+3}"))
        st.append(Ins(f"s_mov_b32 s{S_STO}, {plane_off + seg * 2048}"))
        for tg in range(2):
            st.append(Ins(f"buffer_store_dwordx4 {vr(t+tg*4,4)}, v{V_ST}, {srd(S_WS)}, s{S_STO} offen offset:{tg*1024} {store_flags}".rstrip()))
        return st
    f_first = []; nseg = 0
    epi = []
    for s in range(7):
        gA = Group('w2', S_W2, V_DO, s * 128, tag=('w2', s, 0)); gB = Group('w2', S_W2, V_DO, s * 128 + 128 * 896, tag=('w2', s, 1))
        groups += [gA, gB]
        f_first.append(len(steps))
        accb = V_S + (nseg % 2) * 16; nseg += 1
        for ks in range(7):
            g = gA if ks < 4 else gB
            for t in range(2):
                f = frag(); mfs = []
                for tg in range(2):
                    acc = accb + (t * 2 + tg) * 4
                    mfs.append(Ins(f"{MF} {vr(acc,4)}, {ar(f,4)}, {ar(A_H + (ks*2+tg)*4, 4)}, {vr(acc,4) if ks else '0'}"))
                steps.append(Step(mfs, [Rd('tr', f, [g], ('o', t), (ks % 4) * 4096, 2048)], group=[g], name=f"f{s}.{ks}.{t}"))
        epi.append((accb, s, 8 * PLANE, len(steps)))
    o_first = []
    for s in range(7):
        gs = [Group('wo', S_WO, V_DO, s * 128 + q * 128 * 896, tag=('wo', s, q)) for q in range(4)]
        groups += gs
        o_first.append(len(steps))
        accb = V_S + (nseg % 2) * 16; nseg += 1
        for kap in range(16):
            g = gs[kap // 4]
            for t in range(2):
                f = frag(); mfs = []
                for tg in range(2):
                    acc = accb + (t * 2 + tg) * 4
                    mfs.append(Ins(f"{MF} {vr(acc,4)}, {ar(f,4)}, {ar(a_of(kap, tg), 4)}, {vr(acc,4) if kap else '0'}"))
                steps.append(Step(mfs, [Rd('tr', f, [g], ('o', t), (kap % 4) * 4096, 2048)], group=[g], name=f"o{s}.{kap}.{t}"))
        epi.append((accb, s, 0, len(steps)))
    nsteps = len(steps)
    seg_first = f_first + o_first + [nsteps, nsteps]
    fbar = []
    for s in range(7):
        fbar.append(seg_first[s + 1] - D - 1); barriers.append(fbar[-1])
    for s in range(7):
        barriers.append(o_first[s] + 16 - D - 1)
        if s < 6: barriers.append(o_first[s] + 32 - D - 1)
    tail = []
    for n, (accb, s, po, e) in enumerate(epi):
        st = epilogue(accb, s, po, e, None)
        if e >= nsteps: tail += st
        else: streams.append((st, e, min(seg_first[n + 2], nsteps) - 1))
    ofin0 = [Ins(f"v_rcp_f32 v{V_RL0}, v{V_L}"), Ins(f"v_rcp_f32 v{V_RL1}, v{V_L+4}")]
    of_reads = []
    for b in range(4):
        st = list(ofin0) if b == 0 else []
        scr = SCR_A if b % 2 == 0 else SCR_B
        wrs = []
        for n, (kk, tg) in enumerate([(2 * b, 0), (2 * b, 1), (2 * b + 1, 0), (2 * b + 1, 1)]):
            t = V_T + (n % 2) * 4
            a0 = V_ACC + ((2 * kk) * 2 + tg) * 4; a1 = V_ACC + ((2 * kk + 1) * 2 + tg) * 4
            rl = V_RL0 + tg
            for r in range(4): st.append(Ins(f"v_mul_f32 v{a0+r}, v{a0+r}, v{rl}"))
            for r in range(4): st.append(Ins(f"v_mul_f32 v{a1+r}, v{a1+r}, v{rl}"))
            st.append(Ins(f"v_cvt_pk_bf16_f32 v{t}, v{a0}, v{a0+1}")); st.append(Ins(f"v_cvt_pk_bf16_f32 v{t+1}, v{a0+2}, v{a0+3}"))
            st.append(Ins(f"v_cvt_pk_bf16_f32 v{t+2}, v{a1}, v{a1+1}")); st.append(Ins(f"v_cvt_pk_bf16_f32 v{t+3}, v{a1+2}, v{a1+3}"))
            w = Ins(f"ds_write_b128 v{V_OW}, {vr(t,4)} offset:{(scr - SCR_B) + n*1024}", lds=lds_w([(scr, scr + SLOT)], ('o', b)))
            st.append(w); wrs.append(w)
        e = p3_start if b == 0 else fbar[b - 1] + 1
        streams.append((st, e, fbar[b] - 1))
        bar_extra.setdefault(fbar[b], []).extend(wrs)
        rds = []
        for hh in range(2):
            for n, (kk, tg) in enumerate([(2 * b, 0), (2 * b, 1), (2 * b + 1, 0), (2 * b + 1, 1)]):
                rds.append(Ins(f"ds_read_b128 {ar(a_of(hh*8+kk, tg),4)}, v{V_OR} offset:{(scr - SCR_B) + hh*4096 + n*1024}", lds=lds_r([(scr, scr + SLOT)], ('o', b))))
        streams.append((rds, fbar[b] + 1, fbar[b + 1] - 2))
        bar_extra.setdefault(fbar[b + 1], []).append(rds[-1])
        of_reads += rds
    steps[o_first[0]].needs += [of_reads[-1]]
    steps[f_first[0]].needs += [steps[p2bar[14] + 1].must[-1]]
    scr_free = {8: fbar[4], 9: fbar[3]}
    scr_free = {8: fbar[4], 9: fbar[4]}

    barriers = sorted(set(barriers))
    for si, st in enumerate(steps):
        for g in (st.group or []):
            if g.first_read is None: g.first_read = si - D
            g.last_use = si
    import bisect
    def bar_after(x):
        k = bisect.bisect_left(barriers, x); return barriers[k] if k < len(barriers) else None
    def bar_before(x):
        k = bisect.bisect_left(barriers, x); return barriers[k - 1] if k else -1
    free_at = {s: -1 for s in range(9)}
    p1slots_done = False
    log = []
    def dma_ins(g):
        base = g.slot * SLOT
        l = [Ins(f"s_add_u32 m0, s{S_W4K}, {base}"), Ins(f"s_mov_b32 s{S_SOFF}, {g.soff}")]
        rs = [(base, base + SLOT)]
        for i in range(4):
            l.append(Ins(f"buffer_load_dwordx4 v{g.vo+i}, {srd(g.srdb)}, s{S_SOFF} offen offset:{i*1024} lds", lds=lds_w(rs, g.tag)))
        return l
    for g in groups:
        if g.slot is None:
            cands = dict(free_at)
            if g.kind in ('k', 'v', 'w2'): cands.pop(8, None); cands.pop(9, None)
            else:
                for s in (8, 9): cands[s] = max(cands.get(s, -1) if s in used_late else -1, scr_free[s])
            g.slot = min(cands, key=lambda s: (cands[s], s))
            fa = cands[g.slot]
            if g.slot >= 8: used_late.add(g.slot)
        else:
            fa = free_at[g.slot]
            used_late = set()
        free_at[g.slot] = bar_after(g.last_use)
        if free_at[g.slot] is None: free_at[g.slot] = 10**9
        g.ins = dma_ins(g)
        cert = bar_before(g.first_read)
        g.cert = cert
        g.fa = fa
    NPRO = opt.get("npro", 6)
    pro_groups = groups[:NPRO]
    def pace(x):
        if x < p2_start - 30: return opt.get("pace1", 1.85)
        if x < p3_start - 60: return opt.get("pace2", 3.5)
        return opt.get("pace3", 1.9)
    cur = 0.0
    for g in groups[NPRO:]:
        cur = max(cur, g.fa + 1)
        latest = g.cert - opt.get("minfl", 10) - 3
        poss = []
        for i in range(4):
            poss.append(int(min(cur, latest + i))); cur = min(cur, latest + i) + pace(cur)
        for a, b in zip(poss, poss[1:]): assert a <= b
        assert poss[0] > g.fa and poss[-1] < g.cert, (g.tag, poss, g.fa, g.cert)
        steps[poss[0]].must += g.ins[:3]
        for i in range(1, 4): steps[poss[i]].must.append(g.ins[2 + i])
        log.append((g.tag, g.slot, g.fa, poss, g.cert, g.cert - poss[-1]))
    if opt.get("log"):
        for l in log: print(l)
    cert_at = {}
    for g in groups: cert_at.setdefault(g.cert, []).append(g.ins[-1])

    idx = 0
    p1ra = [(('wq', m), r) for m in range(4) for r in range(2)] + [(('w1', m), r) for m in range(2) for r in range(3)]
    for k in p1ra: RA[k] = V_RA + idx; idx += 1
    p2k = [(('k', m), r) for m in range(2) for r in range(2)]
    for k in p2k: RA[k] = V_RA + idx; idx += 1
    assert idx == 18
    p2v = [(('v', m), r) for m in range(4) for r in range(2)]
    for n, k in enumerate(p2v): RA[k] = V_RA + n
    p3o = [(('o', m), r) for m in range(2) for r in range(3)]
    for n, k in enumerate(p3o): RA[k] = V_RA + 8 + n
    ra_v = [Ins(f"v_sub_u32 v{RA[k]}, v{RA[k]}, v{V_RL0}") for k in p2v]
    streams.append((ra_v, p2_start - 7 - D + 1, pv_first[0] - D - 1))
    ra_o = [Ins(f"s_mov_b32 s{S_T0}, 65536"), Ins(f"s_mov_b32 s{S_T1}, 131072")]
    for (k, r) in p3o:
        t = k[1]
        add = ["0", f"s{S_T0}", f"s{S_T1}"][r]
        ra_o.append(Ins(f"v_xad_u32 v{RA[(k, r)]}, v{V_RL1}, {t*32}, {add}"))
    streams.append((ra_o, p2_start + 2, p2_start + 40))

    def l2pf(srdb, vo): return Ins(f"buffer_load_dword v{V_DUM}, v{vo}, {srd(srdb)}, 0 offen")

    T = V_T
    L = V_LANE
    P(f"s_cmp_ge_u32 s2, 256"); P("s_cbranch_scc1 L_k1_end")
    P("s_load_dwordx16 s[8:23], s[0:1], 0"); P("s_load_dwordx8 s[24:31], s[0:1], 64"); P("s_load_dwordx2 s[32:33], s[0:1], 96")
    STR = [90, 94, 8, 12, 16, 20, 24, 28]
    PM = opt.get("stamp") == 4
    if PM: STR = [90, 92, 94, 96, 98, 100, 4, 6]
    def stamp(k):
        if PM: return []
        return [Ins(f"s_memtime s[{STR[k]}:{STR[k]+1}]"), Ins(f"s_memrealtime s[{STR[k]+2}:{STR[k]+3}]")] if opt.get("stamp") else []
    def pstamp(k):
        if PM: pro.append(Ins(f"s_memtime s[{STR[k]}:{STR[k]+1}]"))
    pstamp(0)
    pro.extend(stamp(0))
    P(f"s_getpc_b64 s[{S_CODE}:{S_CODE+1}]")
    P("L_k1_pc:")
    P(f"s_mov_b32 s{S_CODE+2}, L_code_end-L_k1_pc"); P(f"s_mov_b32 s{S_CODE+3}, 0x20000")
    P(f"v_and_b32 v{L}, 63, v0"); P(f"v_lshrrev_b32 v{T+1}, 6, v0")
    P(f"v_readfirstlane_b32 s{S_W}, v{T+1}")
    P(f"s_and_b32 s{S_J}, s2, 7"); P(f"s_lshr_b32 s{S_TT}, s2, 3")
    P(f"s_and_b32 s{S_HH}, s{S_W}, 1"); P(f"s_lshr_b32 s{S_G}, s{S_W}, 1"); P(f"s_lshl_b32 s{S_W4K}, s{S_W}, 12")
    S_U = S_BAD + 1
    P(f"s_lshl_b32 s{S_U}, s{S_TT}, 2"); P(f"s_add_u32 s{S_U}, s{S_U}, s{S_W}")
    P(f"v_mov_b32 v{T+15}, 0x7f000000")
    def pf_lin(dst, n):
        P(f"s_mul_i32 s{S_T0}, s{S_U}, {n}"); P(f"v_add_u32 v{dst}, s{S_T0}, v{L}"); P(f"v_lshlrev_b32 v{dst}, 7, v{dst}")
        P(f"v_cmp_gt_u32 vcc, {n}, v{L}"); P(f"v_cndmask_b32 v{dst}, v{T+15}, v{dst}, vcc")
    pf_lin(T, 5)
    P(f"buffer_load_dword v{V_DUM}, v{T}, {srd(S_CODE)}, 0 offen")
    P(f"v_lshrrev_b32 v{T+5}, 3, v{L}"); P(f"v_and_b32 v{T+6}, 7, v{L}"); P(f"v_lshlrev_b32 v{T+6}, 4, v{T+6}"); P(f"v_lshrrev_b32 v{T+7}, 4, v{L}")
    P(f"v_mul_u32_u24 v{T+3}, 896, v{T+5}"); P(f"s_mul_i32 s{S_T0}, s{S_W}, {16*896}"); P(f"v_add3_u32 v{T+3}, v{T+3}, v{T+6}, s{S_T0}")
    P(f"v_add_u32 v{T+4}, {8*896}, v{T+3}")
    PF = 120
    pf_lin(PF + 0, 28)
    P(f"v_and_b32 v{T+9}, 0x380, v{PF}"); P(f"v_and_b32 v{T+10}, 0xfffffc00, v{PF}"); P(f"v_lshl_add_u32 v{T+10}, v{T+10}, 3, v{T+9}")
    P(f"v_cndmask_b32 v{PF}, v{T+15}, v{T+10}, vcc")
    pf_lin(PF + 1, 14)
    P(f"v_and_b32 v{T+9}, 0x180, v{PF+1}"); P(f"v_lshrrev_b32 v{T+10}, 9, v{PF+1}"); P(f"v_mul_u32_u24 v{T+10}, 3584, v{T+10}"); P(f"v_add_u32 v{T+10}, v{T+10}, v{T+9}")
    P(f"v_cndmask_b32 v{PF+1}, v{T+15}, v{T+10}, vcc")
    P(f"s_mul_i32 s{S_T1}, s{S_TT}, 57344")
    P("s_waitcnt lgkmcnt(0)")
    pstamp(1)
    def mk_srd(b, ptr, off_s, size):
        P(f"s_add_u32 s{b}, s{ptr}, s{off_s}"); P(f"s_addc_u32 s{b+1}, s{ptr+1}, 0")
        if isinstance(size, tuple): P(f"s_sub_u32 s{b+2}, {size[1]}, s{off_s}")
        else: P(f"s_mov_b32 s{b+2}, {size}")
        P(f"s_mov_b32 s{b+3}, 0x20000")
    mk_srd(S_X, 8, S_T1, 57344)
    P(f"s_lshl_b32 s{S_T0}, s{S_J}, 10"); mk_srd(S_WQ, 14, S_T0, ('sub', 448 * 8192))
    P(f"s_mul_i32 s{S_T0}, s{S_J}, 448"); mk_srd(S_W1, 20, S_T0, ('sub', 448 * 3584)); mk_srd(S_B1, 22, S_T0, 448)
    if opt.get("l2pf", 1) and not opt.get("pfafter"):
        pro.append(l2pf(S_WQ, PF)); pro.append(l2pf(S_W1, PF + 1))
    xl = [P(f"buffer_load_dwordx4 {vr(V_XR+4*(h*7+n),4)}, v{T+3+h}, {srd(S_X)}, 0 offen offset:{128*n}") for n in range(7) for h in range(2)]
    if opt.get("l2pf", 1) and opt.get("pfafter"):
        pro.append(l2pf(S_WQ, PF)); pro.append(l2pf(S_W1, PF + 1))
    pstamp(2)
    P(f"s_lshl_b32 s{S_T1}, s{S_W}, 7")
    P(f"v_and_b32 v{T+8}, 1, v{T+7}"); P(f"v_lshlrev_b32 v{T+8}, 5, v{T+8}"); P(f"v_xor_b32 v{T+8}, v{T+8}, v{T+6}")
    P(f"v_xor_b32 v{T+9}, 64, v{T+8}")
    P(f"v_lshlrev_b32 v{T+10}, 13, v{T+5}"); P(f"v_add_u32 v{T+10}, s{S_T1}, v{T+10}")
    for i in range(4):
        P(f"v_add_u32 v{V_DQ+i}, v{T+10}, v{T+8+(i&1)}")
        if i: P(f"v_add_u32 v{V_DQ+i}, {i*8*8192 - i*1024}, v{V_DQ+i}")
    P(f"v_mul_u32_u24 v{T+10}, 3584, v{T+5}"); P(f"v_add_u32 v{T+10}, s{S_T1}, v{T+10}")
    P(f"s_cmp_eq_u32 s{S_W}, 3"); P(f"s_cselect_b32 s{S_T0}, 0x1000000, 0")
    for i in range(4):
        P(f"v_and_b32 v{T+11}, 64, v{T+8+(i&1)}"); P(f"v_mul_lo_u32 v{T+11}, v{T+11}, s{S_T0}")
        P(f"v_add3_u32 v{V_D1+i}, v{T+10}, v{T+8+(i&1)}, v{T+11}")
        if i: P(f"v_add_u32 v{V_D1+i}, {i*8*3584 - i*1024}, v{V_D1+i}")
    P(f"v_lshlrev_b32 v{T+11}, 3, v{T+7}"); P(f"s_lshl_b32 s{S_T0}, s{S_HH}, 5"); P(f"v_add_u32 v{T+11}, s{S_T0}, v{T+11}")
    bl = [P(f"buffer_load_dwordx2 {vr(2*i,2)}, v{T+11}, {srd(S_B1)}, 0 offen offset:{64*i}") for i in range(7)]
    pstamp(3)
    P(f"v_bfe_u32 v{T+8}, v{L}, 2, 2"); P(f"v_and_b32 v{T+9}, 3, v{L}"); P(f"v_lshlrev_b32 v{T+9}, 3, v{T+9}")
    P(f"v_and_b32 v{T+10}, 1, v{T+7}"); P(f"v_lshlrev_b32 v{T+10}, 6, v{T+10}"); P(f"v_lshrrev_b32 v{T+11}, 1, v{T+8}"); P(f"v_lshl_or_b32 v{T+10}, v{T+11}, 5, v{T+10}")
    P(f"v_lshl_or_b32 v{T+9}, v{T+8}, 7, v{T+9}"); P(f"v_or_b32 v{T+9}, v{T+9}, v{T+10}")
    P(f"v_lshl_add_u32 v{T+2}, v{T+7}, 10, v{T+9}")
    P(f"v_lshl_add_u32 v{T+3}, v{T+7}, 9, v{T+9}")
    P(f"s_lshl_b32 s{S_T0}, s{S_HH}, 14"); P(f"s_lshl_b32 s{S_T1}, s{S_HH}, 5")
    for m in range(4):
        P(f"v_xor_b32 v{RA[(('wq',m),0)]}, {m*32}, v{T+2}"); P(f"v_add_u32 v{RA[(('wq',m),0)]}, s{S_T0}, v{RA[(('wq',m),0)]}")
        P(f"v_add_u32 v{RA[(('wq',m),1)]}, 65536, v{RA[(('wq',m),0)]}")
    for m in range(2):
        P(f"v_xor_b32 v{RA[(('w1',m),0)]}, {m*64}, v{T+2}"); P(f"v_xor_b32 v{RA[(('w1',m),0)]}, s{S_T1}, v{RA[(('w1',m),0)]}")
        P(f"v_add_u32 v{RA[(('w1',m),1)]}, 65536, v{RA[(('w1',m),0)]}"); P(f"v_add_u32 v{RA[(('w1',m),2)]}, 131072, v{RA[(('w1',m),0)]}")
    P(f"v_lshlrev_b32 v{V_RL0}, 9, v{T+7}"); P(f"v_add_u32 v{V_RL0}, s{S_T0}, v{V_RL0}")
    P(f"s_lshl_b32 s{S_T1}, s{S_HH}, 6"); P(f"v_xor_b32 v{V_RL1}, s{S_T1}, v{T+3}")
    P(f"v_and_b32 v{T+8}, 15, v{L}")
    P(f"v_lshrrev_b32 v{T+9}, 2, v{T+8}"); P(f"v_sub_u32 v{T+9}, 0, v{T+9}"); P(f"v_and_b32 v{T+9}, 3, v{T+9}"); P(f"v_xor_b32 v{T+9}, v{T+9}, v{T+7}")
    P(f"v_lshlrev_b32 v{T+9}, 4, v{T+9}"); P(f"v_lshl_or_b32 v{T+9}, v{T+8}, 6, v{T+9}")
    P(f"s_lshl_b32 s{S_T0}, s{S_G}, 11"); P(f"s_add_u32 s{S_T0}, s{S_T0}, {SCR_A}"); P(f"v_add_u32 v{V_XRD}, s{S_T0}, v{T+9}")
    P(f"v_lshrrev_b32 v{T+9}, 5, v{L}"); P(f"v_sub_u32 v{T+9}, 0, v{T+9}"); P(f"v_and_b32 v{T+9}, 3, v{T+9}")
    P(f"v_and_b32 v{T+10}, 3, v{L}"); P(f"v_xor_b32 v{T+9}, v{T+9}, v{T+10}"); P(f"v_lshlrev_b32 v{T+9}, 4, v{T+9}")
    P(f"v_lshl_or_b32 v{T+9}, v{T+5}, 6, v{T+9}")
    P(f"v_bfe_u32 v{T+10}, v{L}, 2, 1"); P(f"v_lshl_or_b32 v{T+9}, v{T+10}, 12, v{T+9}")
    P(f"s_lshl_b32 s{S_T0}, s{S_W}, 10"); P(f"s_add_u32 s{S_T0}, s{S_T0}, {SCR_A}"); P(f"v_add_u32 v{V_XW[0]}, s{S_T0}, v{T+9}")
    P(f"v_xor_b32 v{V_XW[1]}, 32, v{V_XW[0]}"); P(f"v_add_u32 v{V_XW[1]}, 512, v{V_XW[1]}")
    for r in range(4): P(f"v_mov_b32 v{V_ONE+r}, 0x3f803f80")
    late = []
    Q = lambda t: late.append(Ins(t))
    LT = 112
    P(f"s_lshl_b32 s{S_T0}, s{S_J}, 20"); P(f"s_add_u32 s{S_T0}, s{S_T0}, {1536*512}")
    mk_srd(S_K, 10, S_T0, 262144); mk_srd(S_V, 12, S_T0, 262144)
    P(f"s_mul_i32 s{S_T0}, s{S_J}, 458752"); mk_srd(S_WO, 16, S_T0, 458752)
    P(f"s_mul_i32 s{S_T0}, s{S_J}, 200704"); mk_srd(S_W2, 24, S_T0, 200704)
    P(f"s_mul_i32 s{S_T0}, s{S_J}, {PLANE}"); mk_srd(S_WS, 32, S_T0, 9 * PLANE)
    P(f"s_mov_b32 s{S_QC}, {f32(math.log2(math.e)/16)}")
    C1 = -2 * math.log2(math.e) * math.sqrt(2 / math.pi)
    P(f"s_mov_b32 s{S_C3}, {f32(C1*0.044715)}"); P(f"v_mov_b32 v{V_C1}, {f32(C1)}")
    P(f"s_lshl_b32 s{S_T1}, s{S_W}, 7")
    P(f"v_lshlrev_b32 v{T+10}, 9, v{T+5}"); P(f"v_add_u32 v{T+10}, s{S_T1}, v{T+10}")
    P(f"v_lshlrev_b32 v{T+11}, 4, v{T+7}"); P(f"v_xor_b32 v{T+11}, v{T+11}, v{T+6}")
    for i in range(4):
        P(f"v_xad_u32 v{V_DK+i}, v{T+11}, {64*(i&1)}, v{T+10}")
        if i: P(f"v_add_u32 v{V_DK+i}, {i*8*512 - i*1024}, v{V_DK+i}")
    P(f"v_lshlrev_b32 v{T+11}, 5, v{T+7}"); P(f"v_xor_b32 v{T+11}, v{T+11}, v{T+6}")
    P(f"v_add_u32 v{V_DV}, v{T+10}, v{T+11}")
    for i in range(1, 4): P(f"v_add_u32 v{V_DV+i}, {i*8*512 - i*1024}, v{V_DV}")
    P(f"v_mul_u32_u24 v{T+10}, 896, v{T+5}"); P(f"s_mul_i32 s{S_T0}, s{S_W}, 28672"); P(f"v_add3_u32 v{V_DO}, v{T+10}, v{T+11}, s{S_T0}")
    for i in range(1, 4): P(f"v_add_u32 v{V_DO+i}, {i*8*896 - i*1024}, v{V_DO}")
    P(f"v_lshrrev_b32 v{T+9}, 1, v{T+8}"); P(f"v_xor_b32 v{T+9}, v{T+9}, v{T+7}"); P(f"v_lshlrev_b32 v{T+9}, 4, v{T+9}")
    P(f"v_lshl_or_b32 v{RA[(('k',0),0)]}, v{T+8}, 7, v{T+9}"); P(f"v_xor_b32 v{RA[(('k',1),0)]}, 64, v{RA[(('k',0),0)]}")
    for m in range(2): P(f"v_add_u32 v{RA[(('k',m),1)]}, 65536, v{RA[(('k',m),0)]}")
    P(f"v_lshlrev_b32 v{T+9}, 4, v{L}")
    P(f"s_lshl_b32 s{S_T0}, s{S_G}, 10"); P(f"s_add_u32 s{S_T0}, s{S_T0}, {SCR_A}"); P(f"v_add_u32 v{V_HR}, s{S_T0}, v{T+9}")
    P(f"s_lshl_b32 s{S_T0}, s{S_HH}, 3"); P(f"v_add_u32 v{V_HW}, s{S_T0}, v{V_HR}")
    P(f"s_add_u32 s{S_T0}, s{S_W4K}, {SCR_B}"); P(f"v_add_u32 v{V_OW}, s{S_T0}, v{T+9}")
    P(f"s_lshl_b32 s{S_T0}, s{S_G}, 13"); P(f"s_add_u32 s{S_T0}, s{S_T0}, {SCR_B}"); P(f"v_add_u32 v{V_OR}, s{S_T0}, v{T+9}")
    P(f"s_mul_i32 s{S_T0}, s{S_U}, 14336"); P(f"v_add_u32 v{V_ST}, s{S_T0}, v{T+9}")
    if opt.get("oob"):
        for b in (S_WQ, S_W1, S_K, S_V, S_WO, S_W2): P(f"s_mov_b32 s{b+2}, 0")
    pstamp(4)
    pro.append(wait_vm(xl[-1]))
    pstamp(5)
    pro.extend(stamp(1))
    rest = sum([g.ins for g in pro_groups], [])
    st = []
    for a in range(4): st.append(Ins(f"v_mov_b32 v{T+8+a}, 0"))
    for n in range(7):
        for dw in range(4):
            for h in range(2):
                x = V_XR + (h * 7 + n) * 4 + dw
                st.append(Ins(f"v_dot2_f32_bf16 v{T+8+h}, v{x}, v{V_ONE}, v{T+8+h}"))
                st.append(Ins(f"v_dot2_f32_bf16 v{T+10+h}, v{x}, v{x}, v{T+10+h}"))
    for mod in ("quad_perm:[1,0,3,2]", "quad_perm:[2,3,0,1]", "row_half_mirror"):
        for a in range(4): st.append(Ins(f"v_add_f32_dpp v{T+8+a}, v{T+8+a}, v{T+8+a} {mod} row_mask:0xf bank_mask:0xf"))
    for a in range(4): st.append(Ins(f"v_mul_f32 v{T+8+a}, {f32(1/448)}, v{T+8+a}"))
    for h in range(2): st.append(Ins(f"v_fma_f32 v{T+10+h}, -v{T+8+h}, v{T+8+h}, v{T+10+h}"))
    for h in range(2): st.append(Ins(f"v_max_f32 v{T+10+h}, 0, v{T+10+h}"))
    for h in range(2): st.append(Ins(f"v_add_f32 v{T+10+h}, {f32(1e-5)}, v{T+10+h}"))
    for h in range(2): st.append(Ins(f"v_rsq_f32 v{V_RSTD[h]}, v{T+10+h}"))
    for h in range(2): st.append(Ins(f"v_mul_f32 v{V_NB[h]}, v{T+8+h}, v{V_RSTD[h]}"))
    for h in range(2): st.append(Ins(f"v_sub_f32 v{V_NB[h]}, 0, v{V_NB[h]}"))
    st += ln_piece(0)
    st.append(wait_vm(bl[-1]))
    for i in range(7):
        st += [Ins(f"v_lshlrev_b32 v{T+8}, 16, v{2*i}"), Ins(f"v_and_b32 v{T+9}, 0xffff0000, v{2*i}"),
               Ins(f"v_lshlrev_b32 v{T+10}, 16, v{2*i+1}"), Ins(f"v_and_b32 v{T+11}, 0xffff0000, v{2*i+1}")]
        for tg in range(2):
            for r in range(4): st.append(Ins(f"v_accvgpr_write_b32 a{A_H + (i*2+tg)*4 + r}, v{T+8+r}"))
    ndma = max(1, sum(1 for i in rest if i.kind == 'vmem'))
    every = opt.get("proevery", max(1, len(st) // ndma))
    for k, i in enumerate(st):
        pro.append(i)
        if k % every == every - 1:
            while rest:
                x = rest.pop(0); pro.append(x)
                if x.kind == 'vmem': break
    pro.extend(rest)
    if opt.get("l2pf", 1):
        def pf_late(n, srds, at):
            l = [Ins(f"s_mul_i32 s{S_T0}, s{S_U}, {n}"), Ins(f"v_add_u32 v{V_T+15}, s{S_T0}, v{L}"), Ins(f"v_lshlrev_b32 v{V_T+15}, 7, v{V_T+15}"),
                 Ins(f"v_cmp_gt_u32 vcc, {n}, v{L}"), Ins(f"v_mov_b32 v{V_DUM2}, 0x7f000000"), Ins(f"v_cndmask_b32 v{V_T+15}, v{V_DUM2}, v{V_T+15}, vcc")]
            l += [l2pf(b, V_T + 15) for b in srds]
            streams.append((l, at, at + 8))
        V_DUM2 = V_T + 11
        pf_late(16, [S_K, S_V], opt.get("pfkv", p1_first[4]))
        pf_late(13, [S_W2], opt.get("pfw2", p1_first[9]))
        pf_late(28, [S_WO], opt.get("pfwo", p1_first[11]))
    pstamp(6)
    pro.append(wait_lgkm(xw_ins[0])); pro.append(wait_vm(cert_at.get(-1, [])))
    P("s_barrier")
    pstamp(7)
    rd0 = xb_reads(0); pro.extend(rd0); steps[0].needs += rd0

    for st in steps: st.reads = sum([make_reads(r) for r in st.reads], [])
    for si in range(D): pro.extend(steps[si].reads)
    S = []
    for (lst, e, dl) in streams:
        for i in lst:
            if i.earliest is None: i.earliest = e
            if i.deadline is None: i.deadline = dl + 1
        S.append(list(lst))
    CAP = opt.get("cap", 4)
    seq = list(pro) + stamp(2)
    barset = set(barriers)
    loads = []
    for si, st in enumerate(steps):
        toks = list(st.needs)
        if st.reads: toks.append(st.reads[-1])
        if si % 2 == 0 and si + 1 < nsteps and steps[si + 1].reads: toks.append(steps[si + 1].reads[-1])
        if toks: seq.append(wait_lgkm(toks))
        F = []
        if si + D < nsteps: F += steps[si + D].reads
        F += st.must
        load = sum(i.cost for i in F) + (2 if si in barset else 0) + 0.5
        def take(q):
            i = q.pop(0); F.append(i); return i.cost
        act = [q for q in S if q and q[0].earliest <= si]
        for q in act:
            dl = None
            n_now = 0; cum = 0
            for k, i in enumerate(q):
                if i.earliest > si: break
                left = i.deadline - si
                assert left >= 1, f"missed deadline {i.text} at step {si}"
                need = math.ceil((k + 1) / left) if left > 1 else k + 1
                if left == 1 or opt.get("even", 1): n_now = max(n_now, need if left > 1 and (k + 1) / left >= 1 else (k + 1 if left == 1 else 0))
            for _ in range(n_now):
                if q and q[0].earliest <= si: load += take(q)
        while load < CAP:
            act = [q for q in S if q and q[0].earliest <= si and load + q[0].cost <= CAP + 0.5]
            if not act: break
            q = min(act, key=lambda q: q[0].deadline)
            load += take(q)
        loads.append(load)
        tot = sum(i.cost for i in F) + (2 if si in barset else 0)
        g1 = []; c = 0
        while F and c + F[0].cost <= (tot + 1) // 2:
            c += F[0].cost; g1.append(F.pop(0))
        seq.append(st.mf[0]); seq += g1; seq.append(st.mf[1]); seq += F
        if si in barset:
            if bar_extra.get(si): seq.append(wait_lgkm(bar_extra[si]))
            if cert_at.get(si): seq.append(wait_vm(cert_at[si]))

            seq.append(Ins("s_barrier"))
        stp = {p2_start - 1: 3, p3_start - 1: 4, o_first[0] - 1: 5, nsteps - 1: 6}
        if opt.get("stamp") == 2: stp = {p1_first[2] - 1: 3, p1_first[5] - 1: 4, p1_first[9] - 1: 5, p1_first[13] - 1: 6}
        if opt.get("stamp") == 3: stp = {p2_start - 1: 3, pv_first[0] - 1: 4, pv_end[4] - 1: 5, pv_end[12] - 1: 6}
        if si in stp: seq += stamp(stp[si])
    assert all(not q for q in S), [q[0].text for q in S if q]
    seq += tail
    if opt.get("stamp"):
        seq.append(Ins("s_waitcnt vmcnt(0)"))
        seq += stamp(7); seq.append(Ins("s_waitcnt lgkmcnt(0)"))
        for k in range(8): seq += [Ins(f"v_mov_b32 v{2*k}, s{STR[k]}"), Ins(f"v_mov_b32 v{2*k+1}, s{STR[k]+(0 if PM else 2)}")]
        seq += [Ins(f"s_lshl_b32 s{S_T0}, s2, 8"), Ins(f"s_lshl_b32 s{S_T1}, s{S_W}, 6"),
                Ins(f"s_add_u32 s{S_T0}, s{S_T0}, s{S_T1}"), Ins(f"s_add_u32 s36, s32, {64<<20}"), Ins("s_addc_u32 s37, s33, 0"),
                Ins("s_mov_b32 s38, 65536"), Ins("s_mov_b32 s39, 0x20000"), Ins(f"v_mov_b32 v20, s{S_T0}")]
        for k in range(4): seq.append(Ins(f"buffer_store_dwordx4 v[{4*k}:{4*k+3}], v20, s[36:39], 0 offen offset:{16*k}"))
    seq.append(Ins("L_k1_end:")); seq.append(Ins("s_endpgm"))
    seq = resolve_waits(seq)
    check_data_waits([i for i in seq if not (i.wr == [('v', V_DUM)])])
    verify_lds(seq)
    own = {id(i): g for g in groups for i in g.ins}
    curg = None
    for i in seq:
        g = own.get(id(i))
        if g is None: continue
        if i.kind == 'salu': curg = g
        else: assert curg is g, ("m0 clobber", g.tag)
    if opt.get("nodma"): seq = [i for i in seq if not (i.kind == 'vmem' and ' lds' in i.text and i.pos > len(pro))]
    if opt.get("novmwait"):
        for i in seq:
            if i.op == 's_waitcnt' and i.pos > len(pro) and 'vmcnt' in i.text and i.pos < len(seq) - 60:
                i.text = re.sub(r'vmcnt\(\d+\)', 'vmcnt(63)', i.text)
    if opt.get("nobar"): seq = [i for i in seq if not (i.op == 's_barrier' and i.pos > len(pro))]
    seq = pad_hazards(seq)
    if opt.get("log"):
        def avg(a, b): return sum(loads[a:b]) / (b - a)
        print("avg load p1 %.2f p2 %.2f ffn2 %.2f oproj %.2f" % (avg(0, p2_start), avg(p2_start, p3_start), avg(p3_start, o_first[0]), avg(o_first[0], nsteps)))
        print("n instr", len(seq), "nops", sum(1 for i in seq if i.note == 'hz'), "waits", sum(1 for i in seq if i.op == 's_waitcnt'), "barriers", sum(1 for i in seq if i.op == 's_barrier'))
    return seq

def gen_k2(opt):
    q = []
    P = lambda t, **k: (q.append(Ins(t, **k)), q[-1])[1]
    P("s_cmp_ge_u32 s2, 448"); P("s_cbranch_scc1 L_k2_end")
    P("s_load_dwordx2 s[4:5], s[0:1], 96"); P("s_load_dwordx2 s[6:7], s[0:1], 0"); P("s_load_dwordx4 s[8:11], s[0:1], 72")
    if opt.get("stamp"): P("s_memrealtime s[60:61]")
    P("s_lshl_b32 s3, s2, 12"); P("v_lshlrev_b32 v1, 4, v0"); P("v_add_u32 v1, s3, v1")
    P("v_lshrrev_b32 v2, 6, v0"); P("v_readfirstlane_b32 s30, v2")
    P("s_waitcnt lgkmcnt(0)")
    P("s_mov_b32 s12, s4"); P("s_mov_b32 s13, s5"); P(f"s_mov_b32 s14, {16*PLANE}"); P("s_mov_b32 s15, 0x20000")
    order = list(range(8, 16)) + list(range(8))
    ld = {}
    for p in order:
        P(f"s_mov_b32 s{40+p}, {p*PLANE}")
        ld[p] = P(f"buffer_load_dwordx4 v[{16+4*p}:{19+4*p}], v1, s[12:15], s{40+p} offen")
        if p == 15:
            P("s_lshl_b32 s31, s2, 2"); P("s_add_u32 s31, s31, s30")
            P("s_and_b32 s32, s31, 1"); P("s_lshr_b32 s33, s31, 1")
            P(f"s_mul_hi_u32 s34, s33, {(2**32 + 6)//7}"); P("s_mul_i32 s35, s34, 7"); P("s_sub_u32 s35, s33, s35")
            P("s_and_b32 s36, s34, 1"); P("s_lshr_b32 s37, s34, 1")
            P("s_lshl_b32 s37, s37, 5"); P("s_lshl_b32 s32, s32, 4"); P("s_add_u32 s37, s37, s32")
            P("s_lshl_b32 s35, s35, 7"); P("s_lshl_b32 s36, s36, 6"); P("s_add_u32 s35, s35, s36")
            P("v_and_b32 v3, 15, v0"); P("v_add_u32 v3, s37, v3"); P("v_mul_u32_u24 v3, 896, v3")
            P("v_bfe_u32 v4, v0, 4, 2"); P("v_lshlrev_b32 v4, 3, v4"); P("v_add_u32 v4, s35, v4"); P("v_add_u32 v3, v3, v4")
            P("s_mov_b32 s16, s6"); P("s_mov_b32 s17, s7"); P(f"s_mov_b32 s18, {PLANE}"); P("s_mov_b32 s19, 0x20000")
            P("s_mov_b32 s20, s8"); P("s_mov_b32 s21, s9"); P("s_mov_b32 s22, 896"); P("s_mov_b32 s23, 0x20000")
            P("s_mov_b32 s24, s10"); P("s_mov_b32 s25, s11"); P(f"s_mov_b32 s26, {PLANE}"); P("s_mov_b32 s27, 0x20000")
            b2a = P("buffer_load_dwordx2 v[8:9], v4, s[20:23], 0 offen"); b2b = P("buffer_load_dwordx2 v[10:11], v4, s[20:23], 0 offen offset:32")
            xa = P("buffer_load_dwordx2 v[12:13], v3, s[16:19], 0 offen"); xb = P("buffer_load_dwordx2 v[14:15], v3, s[16:19], 0 offen offset:32")
    P("s_mov_b32 s28, 0x3f80"); P("s_mov_b32 s29, 0x3f800000")
    B = 80; Sx = 88
    def accum(dst, src, first):
        for dw in range(4):
            for h in range(2):
                P(f"v_dot2_f32_bf16 v{dst+dw*2+h}, v{src+dw}, s{28+h}, {'0' if first else 'v%d' % (dst+dw*2+h)}")
    for n, p in enumerate(range(8, 16)):
        q.append(wait_vm(ld[p])); accum(B, 16 + 4 * p, n == 0)
    q.append(wait_vm(b2b)); accum(B, 8, False)
    G = 96
    for e in range(8): P(f"v_mul_f32 v{G+e}, {f32(-math.log2(math.e))}, v{B+e}")
    for e in range(8): P(f"v_exp_f32 v{G+e}, v{G+e}")
    for e in range(8): P(f"v_add_f32 v{G+e}, 1.0, v{G+e}")
    for e in range(8): P(f"v_rcp_f32 v{G+e}, v{G+e}")
    for e in range(8): P(f"v_mul_f32 v{G+e}, v{G+e}, v{B+e}")
    for n, p in enumerate(range(8)):
        q.append(wait_vm(ld[p])); accum(Sx, 16 + 4 * p, n == 0)
    for e in range(8): P(f"v_mul_f32 v{Sx+e}, v{Sx+e}, v{G+e}")
    accum(Sx, 12, False)
    for dw in range(4): P(f"v_cvt_pk_bf16_f32 v{4+dw}, v{Sx+2*dw}, v{Sx+2*dw+1}")
    P("buffer_store_dwordx2 v[4:5], v3, s[24:27], 0 offen"); P("buffer_store_dwordx2 v[6:7], v3, s[24:27], 0 offen offset:32")
    if opt.get("stamp"):
        P("s_waitcnt vmcnt(0)"); P("s_memrealtime s[62:63]"); P("s_waitcnt lgkmcnt(0)")
        P("v_mov_b32 v4, s60"); P("v_mov_b32 v5, s62"); P("s_lshl_b32 s31, s31, 3"); P("v_mov_b32 v6, s31")
        P(f"s_add_u32 s12, s4, {(64<<20) + 65536}"); P("s_addc_u32 s13, s5, 0"); P("s_mov_b32 s14, 65536")
        P("buffer_store_dwordx2 v[4:5], v6, s[12:15], 0 offen")
    P("L_k2_end:"); P("s_endpgm")
    q = resolve_waits(q); check_data_waits(q); q = pad_hazards(q)
    return q

def kd(name, vg, acc):
    return f""".amdhsa_kernel {name}
  .amdhsa_next_free_vgpr {vg}
  .amdhsa_next_free_sgpr 102
  .amdhsa_accum_offset {acc}
  .amdhsa_group_segment_fixed_size 0
  .amdhsa_kernarg_size 104
  .amdhsa_user_sgpr_count 2
  .amdhsa_user_sgpr_kernarg_segment_ptr 1
  .amdhsa_system_sgpr_workgroup_id_x 1
.end_amdhsa_kernel
"""
def build(opt):
    ref = open(f"cdna_kernels/{NAME}.s.ref").read().split("\n")
    hdr = [l for l in ref[:16] if l.startswith(";") and "@launch" not in l and "Override" not in l and "grid=ceil" not in l]
    out = hdr + ["; @launch kernel=fused_attn_ffn_kernel grid=(256,1,1) block=(256,1,1) lds=163840",
                 "; @launch kernel=reduce_gate_kernel grid=(448,1,1) block=(256,1,1) lds=0",
                 '.amdgcn_target "amdgcn-amd-amdhsa--gfx950"', ".text"]
    for nm, seq in (("fused_attn_ffn_kernel", gen_k1(opt)), ("reduce_gate_kernel", gen_k2(opt))):
        out += [f".globl {nm}", ".p2align 8", f".type {nm},@function", f"{nm}:"]
        out += [(i.text if i.label else "    " + i.text) for i in seq]
    out += ["L_code_end:", '.section .rodata,"a"', ".p2align 6", kd("fused_attn_ffn_kernel", 512, 256), ".p2align 6", kd("reduce_gate_kernel", 104, 104)]
    return "\n".join(out) + "\n"

if __name__ == "__main__":
    opt = dict(log=0)
    for a in sys.argv[2:]:
        k, v = a.split("=")
        try: v = int(v)
        except ValueError:
            try: v = float(v)
            except ValueError: v = v.replace("+", " ")
        opt[k] = v
    txt = build(opt)
    open(sys.argv[1] if len(sys.argv) > 1 else f"cdna_kernels/{NAME}.s", "w").write(txt)
```

```python
import sys, math, struct
from asmlib import *

NAME = "recurrent_scan__sliding_block_cached__dense_activation_gelu__prompt"
PLANE = 2048 * 448 * 2
def f32(x): return "0x%08x" % struct.unpack("<I", struct.pack("<f", x))[0]

S_X, S_WQ, S_W1, S_K, S_V, S_WO, S_W2, S_WS, S_B1, S_CODE = 36, 40, 44, 48, 52, 56, 60, 64, 68, 72
S_W, S_HH, S_G, S_J, S_TT, S_W4K, S_SOFF, S_STO, S_QC, S_C3, S_T0, S_T1, S_BAD = 76, 77, 78, 79, 80, 81, 82, 83, 84, 85, 86, 87, 88
def srd(b): return f"s[{b}:{b+3}]"
V_ACC = 0
V_XR = 128
V_S = 128
V_P = 160
V_L = 168
V_NM = 176
V_ONE = 184
V_T = 188
V_DQ, V_D1, V_DK, V_DV, V_DO = 204, 208, 212, 216, 220
V_RA = 224
V_XW0, V_XRD, V_HW, V_HR, V_OW, V_OR, V_ST, V_RSTD0, V_NB0, V_C1, V_RL0, V_RL1, V_LANE, V_DUM = range(242, 256)
V_XW = [V_XW0, V_T + 12]; V_RSTD = [V_RSTD0, V_T + 13]; V_NB = [V_NB0, V_T + 14]
A_RING, A_XB, A_H, A_Q = 0, 32, 48, 104
def a_of(kap, tg):
    idx = kap * 2 + tg
    if idx < 22: return 168 + 4 * idx
    if idx < 26: return 32 + 4 * (idx - 22)
    return 104 + 4 * (idx - 26)
SLOT = 16384
SCR_A, SCR_B = 9 * SLOT, 8 * SLOT
D = 6

def vr(b, n): return f"v[{b}:{b+n-1}]"
def ar(b, n): return f"a[{b}:{b+n-1}]"
MF = "v_mfma_f32_16x16x32_bf16"

class Step:
    def __init__(s, mf, reads=(), needs=(), group=None, name=""):
        s.mf = mf; s.reads = list(reads); s.needs = list(needs); s.group = group; s.name = name
        s.must = []
        s.fill = []

class Group:
    def __init__(g, kind, srdb, vo, soff, slot=None, tag=None):
        g.kind = kind; g.srdb = srdb; g.vo = vo; g.soff = soff; g.slot = slot; g.tag = tag
        g.first_read = None; g.last_use = None; g.ins = None

def gen_k1(opt):
    dbg = opt.get("dbg", 0)
    pro = []
    P = lambda t, **k: (pro.append(Ins(t, **k)), pro[-1])[1]
    steps = []; groups = []; barriers = []; streams = []
    fr = [0]
    def frag():
        b = A_RING + 4 * (fr[0] % 8); fr[0] += 1; return b

    def lds_r(rs, tag, **k): return dict(rw='r', ranges=rs, tag=tag, **k)
    def lds_w(rs, tag, **k): return dict(rw='w', ranges=rs, tag=tag, **k)

    class Rd:
        def __init__(r, kind, dst, grps, pat, off, half_off):
            r.kind = kind; r.dst = dst; r.grps = grps; r.pat = pat; r.off = off; r.half_off = half_off
    RA = {}
    def ra(pat, region): return RA[(pat, region)]
    def make_reads(r):
        g0 = r.grps[0]
        base = g0.slot * SLOT + r.off
        region = base // 65536; imm = base % 65536
        rs = [(g.slot * SLOT + (r.off // 4096) * 4096, g.slot * SLOT + (r.off // 4096) * 4096 + 4096) for g in r.grps]
        outl = []
        if len(r.grps) == 2: assert r.grps[1].slot == g0.slot + 1
        def tagged(text):
            i = Ins(text); i.lds = lds_r(rs[:1], g0.tag)
            return i
        if r.kind == 'tr':
            assert imm + r.half_off < 65536
            a = tagged(f"ds_read_b64_tr_b16 {ar(r.dst,2)}, v{ra(r.pat, region)} offset:{imm}")
            b = tagged(f"ds_read_b64_tr_b16 {ar(r.dst+2,2)}, v{ra(r.pat, region)} offset:{imm + r.half_off}")
            outl = [a, b]
        else:
            outl = [tagged(f"ds_read_b128 {ar(r.dst,4)}, v{ra(r.pat, region)} offset:{imm}")]
        if len(r.grps) == 2:
            for i in outl: i.lds['ranges'] = rs
        return outl

    xw_ins = {}; xb_ins = {}
    p1_first = []
    for ks in range(14):
        sl = 3 * (ks % 3)
        gq0 = Group('wq', S_WQ, V_DQ, ks * 32 * 8192, slot=sl, tag=('wq', ks))
        gq1 = Group('wq', S_WQ, V_DQ, ks * 32 * 8192 + 512, slot=sl + 1, tag=('wq', ks))
        g1 = Group('w1', S_W1, V_D1, ks * 32 * 3584, slot=sl + 2, tag=('w1', ks))
        groups += [gq0, gq1, g1]
        p1_first.append(len(steps))
        xb = [A_XB + (ks % 2) * 8 + tg * 4 for tg in range(2)]
        for mb in range(16):
            f = frag()
            mfs = []
            for tg in range(2):
                acc = V_ACC + (mb * 2 + tg) * 4
                c = "0" if ks == 0 else vr(acc, 4)
                mfs.append(Ins(f"{MF} {vr(acc,4)}, {ar(f,4)}, {ar(xb[tg],4)}, {c}"))
            steps.append(Step(mfs, [Rd('tr', f, [gq0, gq1], ('wq', mb % 4), (mb // 4) * 4096, 512)], group=[gq0, gq1], name=f"q{ks}.{mb}"))
        for i in range(7):
            f = frag()
            mfs = []
            for tg in range(2):
                acc = A_H + (i * 2 + tg) * 4
                mfs.append(Ins(f"{MF} {ar(acc,4)}, {ar(f,4)}, {ar(xb[tg],4)}, {ar(acc,4)}"))
            steps.append(Step(mfs, [Rd('tr', f, [g1], ('w1', i % 2), (i // 2) * 4096, 512)], group=[g1], name=f"h{ks}.{i}"))
    p2_start = len(steps)
    p1_first.append(p2_start)
    for ks in range(14): barriers.append(p1_first[ks + 1] - D - 1)

    def ln_piece(n):
        st = []
        t = V_T
        ws_ = []
        base = SCR_A + (n % 2) * 8192
        for h in range(2):
            for dw in range(4):
                x = V_XR + (h * 7 + n) * 4 + dw
                st.append(Ins(f"v_lshlrev_b32 v{t+(dw%2)*2}, 16, v{x}"))
                st.append(Ins(f"v_and_b32 v{t+(dw%2)*2+1}, 0xffff0000, v{x}"))
                st.append(Ins(f"v_fma_f32 v{t+(dw%2)*2}, v{t+(dw%2)*2}, v{V_RSTD[h]}, v{V_NB[h]}"))
                st.append(Ins(f"v_fma_f32 v{t+(dw%2)*2+1}, v{t+(dw%2)*2+1}, v{V_RSTD[h]}, v{V_NB[h]}"))
                st.append(Ins(f"v_cvt_pk_bf16_f32 v{x}, v{t+(dw%2)*2}, v{t+(dw%2)*2+1}"))
            w = Ins(f"ds_write_b128 v{V_XW[h]}, {vr(V_XR + (h*7+n)*4, 4)} offset:{(n%2)*8192}", lds=lds_w([(base, base + 8192)], ('xn', n)))
            st.append(w); ws_.append(w)
        xw_ins[n] = ws_
        return st
    def xb_reads(p):
        n = p // 2
        base = SCR_A + (n % 2) * 8192
        l = [Ins(f"ds_read_b128 {ar(A_XB + (p%2)*8 + tg*4, 4)}, v{V_XRD} offset:{(n%2)*8192 + (p%2)*4096 + tg*1024}", lds=lds_r([(base, base + 8192)], ('xn', n))) for tg in range(2)]
        xb_ins[p] = l
        return l
    bar_extra = {}
    for n in range(1, 7):
        e = 0 if n == 1 else barriers[2 * n - 3] + 1
        st = ln_piece(n)
        streams.append((st, e, barriers[2 * n - 1] - 1))
        bar_extra.setdefault(barriers[2 * n - 1], []).extend(xw_ins[n])
    for p in range(1, 14):
        rd = xb_reads(p)
        steps[barriers[p - 1] + 1].must += rd
        steps[p1_first[p]].needs += rd

    gK = [Group('k', S_K, V_DK, j * 16384, tag=('k', j)) for j in range(16)]
    gV = [Group('v', S_V, V_DV, j * 16384, tag=('v', j)) for j in range(16)]
    s_first = {}; s_end = {}; pv_first = {}; pv_end = {}
    def s_steps(j):
        s_first[j] = len(steps)
        groups.append(gK[j])
        for kk in range(8):
            for kb in range(2):
                f = frag(); mfs = []
                for tg in range(2):
                    acc = V_S + (j % 2) * 16 + (kb * 2 + tg) * 4
                    c = vr(acc, 4) if kk else ("0" if j < 2 else vr(V_NM + tg * 4, 4))
                    mfs.append(Ins(f"{MF} {vr(acc,4)}, {ar(f,4)}, {ar(A_Q + (kk*2+tg)*4, 4)}, {c}"))
                steps.append(Step(mfs, [Rd('b128', f, [gK[j]], ('k', kk % 2), (kk // 2) * 4096 + kb * 2048, 0)], group=[gK[j]], name=f"s{j}.{kk}.{kb}"))
        s_end[j] = len(steps)
    def pbuf(j): return V_P if j < 15 else V_S
    def pv_steps(j):
        V_P = pbuf(j)
        pv_first[j] = len(steps)
        groups.append(gV[j])
        for db in range(16):
            f = frag(); mfs = []
            for tg in range(2):
                acc = V_ACC + (db * 2 + tg) * 4
                c = vr(acc, 4) if j else "0"
                mfs.append(Ins(f"{MF} {vr(acc,4)}, {ar(f,4)}, {vr(V_P + tg*4, 4)}, {c}"))
            steps.append(Step(mfs, [Rd('tr', f, [gV[j]], ('v', db % 4), (db // 4) * 4096, 2048)], group=[gV[j]], name=f"pv{j}.{db}"))
        mfs = [Ins(f"{MF} {vr(V_L+tg*4,4)}, {vr(V_ONE,4)}, {vr(V_P + tg*4, 4)}, {vr(V_L+tg*4,4) if j else '0'}") for tg in range(2)]
        steps.append(Step(mfs, name=f"rs{j}"))
        pv_end[j] = len(steps)
    s_steps(0)
    for j in range(16):
        if j < 15: s_steps(j + 1)
        pv_steps(j)
    p3_start = len(steps)
    barriers.append(s_first[1] - D - 1)
    p2bar = {}
    for j in range(16):
        p2bar[j] = pv_end[j] - D - 1
        barriers.append(p2bar[j])

    q13 = p1_first[13]
    qfin = []
    for kk in range(8):
        for tg in range(2):
            t = V_T + ((kk * 2 + tg) % 2) * 4
            st = []
            a0 = V_ACC + ((2 * kk) * 2 + tg) * 4; a1 = V_ACC + ((2 * kk + 1) * 2 + tg) * 4
            for r in range(4): st.append(Ins(f"v_mul_f32 v{a0+r}, s{S_QC}, v{a0+r}"))
            for r in range(4): st.append(Ins(f"v_mul_f32 v{a1+r}, s{S_QC}, v{a1+r}"))
            st.append(Ins(f"v_cvt_pk_bf16_f32 v{t}, v{a0}, v{a0+1}")); st.append(Ins(f"v_cvt_pk_bf16_f32 v{t+1}, v{a0+2}, v{a0+3}"))
            st.append(Ins(f"v_cvt_pk_bf16_f32 v{t+2}, v{a1}, v{a1+1}")); st.append(Ins(f"v_cvt_pk_bf16_f32 v{t+3}, v{a1+2}, v{a1+3}"))
            st2 = [Ins(f"v_permlane32_swap_b32 v{t}, v{t+2}"), Ins(f"v_permlane32_swap_b32 v{t+1}, v{t+3}")]
            st3 = [Ins(f"v_permlane16_swap_b32 v{t}, v{t+2}"), Ins(f"v_permlane16_swap_b32 v{t+1}, v{t+3}")]
            st4 = [Ins(f"v_accvgpr_write_b32 a{A_Q + (kk*2+tg)*4 + r}, v{t+r}") for r in range(4)]
            for i in st + st2 + st3 + st4:
                i.earliest = q13 + 2 * kk + 2; i.deadline = s_first[0] + 2 * kk
            qfin.append((st, st2, st3, st4))
    qs = []
    for kk in range(8):
        A, B = qfin[2 * kk], qfin[2 * kk + 1]
        qs += A[0] + B[0][:2] + A[1] + B[0][2:4] + A[2] + B[0][4:6] + A[3] + B[0][6:]
        nxt = []
        qs += [Ins("s_nop 1")] if False else []
        qs += B[1]; qs += B[2]; qs += B[3]
    streams.append((qs, None, None))

    for j in range(16):
        sb = V_S + (j % 2) * 16
        ex = []
        if j == 0:
            for tg in range(2):
                v = [sb + (kb * 2 + tg) * 4 + r for kb in range(2) for r in range(4)]
                m = V_T + 8 + tg * 2
                ex += [Ins(f"v_max3_f32 v{m}, v{v[0]}, v{v[1]}, v{v[2]}"), Ins(f"v_max3_f32 v{m}, v{m}, v{v[3]}, v{v[4]}"),
                       Ins(f"v_max3_f32 v{m}, v{m}, v{v[5]}, v{v[6]}"), Ins(f"v_max_f32 v{m}, v{m}, v{v[7]}")]
            for sw in ("v_permlane32_swap_b32", "v_permlane16_swap_b32"):
                for tg in range(2): ex.append(Ins(f"v_mov_b32 v{V_T+8+tg*2+1}, v{V_T+8+tg*2}"))
                for tg in range(2): ex.append(Ins(f"{sw} v{V_T+8+tg*2}, v{V_T+8+tg*2+1}"))
                for tg in range(2): ex.append(Ins(f"v_max_f32 v{V_T+8+tg*2}, v{V_T+8+tg*2}, v{V_T+8+tg*2+1}"))
            for tg in range(2):
                for r in range(4): ex.append(Ins(f"v_sub_f32 v{V_NM+tg*4+r}, {f32(-opt.get('moff', 32.0))}, v{V_T+8+tg*2}"))
        if j < 2:
            for kb in range(2):
                for tg in range(2):
                    for r in range(4):
                        x = sb + (kb * 2 + tg) * 4 + r
                        ex.append(Ins(f"v_add_f32 v{x}, v{x}, v{V_NM+tg*4}"))
        for kb in range(2):
            for tg in range(2):
                for r in range(4):
                    x = sb + (kb * 2 + tg) * 4 + r
                    ex.append(Ins(f"v_exp_f32 v{x}, v{x}"))
        cv = []
        for tg in range(2):
            for kb in range(2):
                x = sb + (kb * 2 + tg) * 4
                cv.append(Ins(f"v_cvt_pk_bf16_f32 v{pbuf(j)+tg*4+kb*2}, v{x}, v{x+1}"))
                cv.append(Ins(f"v_cvt_pk_bf16_f32 v{pbuf(j)+tg*4+kb*2+1}, v{x+2}, v{x+3}"))
        e0 = s_end[j] if j != 1 else max(s_end[1], pv_first[0])
        for i in ex: i.earliest = e0; i.deadline = pv_first[j]
        for i in cv: i.earliest = (pv_end[j - 1] if j < 15 else pv_first[14]) if j else s_end[0]; i.deadline = pv_first[j]
        streams.append((ex + cv, None, None))
    for u in range(14):
        j = u + 1
        a = A_H + u * 4; h = V_T + 8; w = V_T + 12
        st = []
        for r in range(4): st.append(Ins(f"v_accvgpr_read_b32 v{h+r}, a{a+r}"))
        for r in range(4): st.append(Ins(f"v_mul_f32 v{w+r}, v{h+r}, v{h+r}"))
        for r in range(4): st.append(Ins(f"v_fma_f32 v{w+r}, v{w+r}, s{S_C3}, v{V_C1}"))
        for r in range(4): st.append(Ins(f"v_mul_f32 v{w+r}, v{w+r}, v{h+r}"))
        for r in range(4): st.append(Ins(f"v_exp_f32 v{w+r}, v{w+r}"))
        for r in range(4): st.append(Ins(f"v_add_f32 v{w+r}, 1.0, v{w+r}"))
        for r in range(4): st.append(Ins(f"v_rcp_f32 v{w+r}, v{w+r}"))
        for r in range(4): st.append(Ins(f"v_mul_f32 v{h+r}, v{h+r}, v{w+r}"))
        st.append(Ins(f"v_cvt_pk_bf16_f32 v{w}, v{h}, v{h+1}")); st.append(Ins(f"v_cvt_pk_bf16_f32 v{w+1}, v{h+2}, v{h+3}"))
        base = SCR_A + (u % 2) * 2048
        wr = Ins(f"ds_write_b64 v{V_HW}, {vr(w,2)} offset:{(u%2)*2048}", lds=lds_w([(base, base + 2048)], ('h', u)))
        st.append(wr)
        streams.append((st, p2bar[j - 1] + 1, p2bar[j] - 1))
        bar_extra.setdefault(p2bar[j], []).append(wr)
        rd = Ins(f"ds_read_b128 {ar(a,4)}, v{V_HR} offset:{(u%2)*2048}", lds=lds_r([(base, base + 2048)], ('h', u)))
        steps[p2bar[j] + 1].must.append(rd)
        bar_extra.setdefault(p2bar[j + 1] if j + 1 < 16 else None, []).append(rd)
    bar_extra.pop(None, None)

    store_flags = opt.get("store_flags", "")
    def epilogue(accb, seg, plane_off, e, dl):
        st = []
        t = V_P
        for tg in range(2):
            for tt_ in range(2):
                x = accb + (tt_ * 2 + tg) * 4
                st.append(Ins(f"v_cvt_pk_bf16_f32 v{t+tg*4+tt_*2}, v{x}, v{x+1}"))
                st.append(Ins(f"v_cvt_pk_bf16_f32 v{t+tg*4+tt_*2+1}, v{x+2}, v{x+3}"))
        st.append(Ins(f"s_mov_b32 s{S_STO}, {plane_off + seg * 2048}"))
        for tg in range(2):
            st.append(Ins(f"buffer_store_dwordx4 {vr(t+tg*4,4)}, v{V_ST}, {srd(S_WS)}, s{S_STO} offen offset:{tg*1024} {store_flags}".rstrip()))
        return st
    f_first = []; nseg = 0
    epi = []
    for s in range(7):
        gA = Group('w2', S_W2, V_DO, s * 128, tag=('w2', s, 0)); gB = Group('w2', S_W2, V_DO, s * 128 + 128 * 896, tag=('w2', s, 1))
        groups += [gA, gB]
        f_first.append(len(steps))
        accb = V_S + (nseg % 2) * 16; nseg += 1
        for ks in range(7):
            g = gA if ks < 4 else gB
            for t in range(2):
                f = frag(); mfs = []
                for tg in range(2):
                    acc = accb + (t * 2 + tg) * 4
                    mfs.append(Ins(f"{MF} {vr(acc,4)}, {ar(f,4)}, {ar(A_H + (ks*2+tg)*4, 4)}, {vr(acc,4) if ks else '0'}"))
                steps.append(Step(mfs, [Rd('tr', f, [g], ('o', t), (ks % 4) * 4096, 2048)], group=[g], name=f"f{s}.{ks}.{t}"))
        epi.append((accb, s, 8 * PLANE, len(steps)))
    o_first = []
    for s in range(7):
        gs = [Group('wo', S_WO, V_DO, s * 128 + q * 128 * 896, tag=('wo', s, q)) for q in range(4)]
        groups += gs
        o_first.append(len(steps))
        accb = V_S + (nseg % 2) * 16; nseg += 1
        for kap in range(16):
            g = gs[kap // 4]
            for t in range(2):
                f = frag(); mfs = []
                for tg in range(2):
                    acc = accb + (t * 2 + tg) * 4
                    mfs.append(Ins(f"{MF} {vr(acc,4)}, {ar(f,4)}, {ar(a_of(kap, tg), 4)}, {vr(acc,4) if kap else '0'}"))
                steps.append(Step(mfs, [Rd('tr', f, [g], ('o', t), (kap % 4) * 4096, 2048)], group=[g], name=f"o{s}.{kap}.{t}"))
        epi.append((accb, s, 0, len(steps)))
    nsteps = len(steps)
    seg_first = f_first + o_first + [nsteps, nsteps]
    fbar = []
    for s in range(7):
        fbar.append(seg_first[s + 1] - D - 1); barriers.append(fbar[-1])
    for s in range(7):
        barriers.append(o_first[s] + 16 - D - 1)
        if s < 6: barriers.append(o_first[s] + 32 - D - 1)
    tail = []
    for n, (accb, s, po, e) in enumerate(epi):
        st = epilogue(accb, s, po, e, None)
        if e >= nsteps: tail += st
        else: streams.append((st, e, min(seg_first[n + 2], nsteps) - 1))
    ofin0 = [Ins(f"v_rcp_f32 v{V_RL0}, v{V_L}"), Ins(f"v_rcp_f32 v{V_RL1}, v{V_L+4}")]
    of_reads = []
    for b in range(4):
        st = list(ofin0) if b == 0 else []
        scr = SCR_A if b % 2 == 0 else SCR_B
        wrs = []
        for n, (kk, tg) in enumerate([(2 * b, 0), (2 * b, 1), (2 * b + 1, 0), (2 * b + 1, 1)]):
            t = V_T + (n % 2) * 4
            a0 = V_ACC + ((2 * kk) * 2 + tg) * 4; a1 = V_ACC + ((2 * kk + 1) * 2 + tg) * 4
            rl = V_RL0 + tg
            for r in range(4): st.append(Ins(f"v_mul_f32 v{a0+r}, v{a0+r}, v{rl}"))
            for r in range(4): st.append(Ins(f"v_mul_f32 v{a1+r}, v{a1+r}, v{rl}"))
            st.append(Ins(f"v_cvt_pk_bf16_f32 v{t}, v{a0}, v{a0+1}")); st.append(Ins(f"v_cvt_pk_bf16_f32 v{t+1}, v{a0+2}, v{a0+3}"))
            st.append(Ins(f"v_cvt_pk_bf16_f32 v{t+2}, v{a1}, v{a1+1}")); st.append(Ins(f"v_cvt_pk_bf16_f32 v{t+3}, v{a1+2}, v{a1+3}"))
            w = Ins(f"ds_write_b128 v{V_OW}, {vr(t,4)} offset:{(scr - SCR_B) + n*1024}", lds=lds_w([(scr, scr + SLOT)], ('o', b)))
            st.append(w); wrs.append(w)
        e = p3_start if b == 0 else fbar[b - 1] + 1
        streams.append((st, e, fbar[b] - 1))
        bar_extra.setdefault(fbar[b], []).extend(wrs)
        rds = []
        for hh in range(2):
            for n, (kk, tg) in enumerate([(2 * b, 0), (2 * b, 1), (2 * b + 1, 0), (2 * b + 1, 1)]):
                rds.append(Ins(f"ds_read_b128 {ar(a_of(hh*8+kk, tg),4)}, v{V_OR} offset:{(scr - SCR_B) + hh*4096 + n*1024}", lds=lds_r([(scr, scr + SLOT)], ('o', b))))
        streams.append((rds, fbar[b] + 1, fbar[b + 1] - 2))
        bar_extra.setdefault(fbar[b + 1], []).append(rds[-1])
        of_reads += rds
    steps[o_first[0]].needs += [of_reads[-1]]
    steps[f_first[0]].needs += [steps[p2bar[14] + 1].must[-1]]
    scr_free = {8: fbar[4], 9: fbar[3]}
    scr_free = {8: fbar[4], 9: fbar[4]}

    barriers = sorted(set(barriers))
    for si, st in enumerate(steps):
        for g in (st.group or []):
            if g.first_read is None: g.first_read = si - D
            g.last_use = si
    import bisect
    def bar_after(x):
        k = bisect.bisect_left(barriers, x); return barriers[k] if k < len(barriers) else None
    def bar_before(x):
        k = bisect.bisect_left(barriers, x); return barriers[k - 1] if k else -1
    free_at = {s: -1 for s in range(9)}
    p1slots_done = False
    log = []
    def dma_ins(g):
        base = g.slot * SLOT
        l = [Ins(f"s_add_u32 m0, s{S_W4K}, {base}"), Ins(f"s_mov_b32 s{S_SOFF}, {g.soff}")]
        rs = [(base, base + SLOT)]
        for i in range(4):
            l.append(Ins(f"buffer_load_dwordx4 v{g.vo+i}, {srd(g.srdb)}, s{S_SOFF} offen offset:{i*1024} lds", lds=lds_w(rs, g.tag)))
        return l
    for g in groups:
        if g.slot is None:
            cands = dict(free_at)
            if g.kind in ('k', 'v', 'w2'): cands.pop(8, None); cands.pop(9, None)
            else:
                for s in (8, 9): cands[s] = max(cands.get(s, -1) if s in used_late else -1, scr_free[s])
            g.slot = min(cands, key=lambda s: (cands[s], s))
            fa = cands[g.slot]
            if g.slot >= 8: used_late.add(g.slot)
        else:
            fa = free_at[g.slot]
            used_late = set()
        free_at[g.slot] = bar_after(g.last_use)
        if free_at[g.slot] is None: free_at[g.slot] = 10**9
        g.ins = dma_ins(g)
        cert = bar_before(g.first_read)
        g.cert = cert
        g.fa = fa
    NPRO = opt.get("npro", 6)
    pro_groups = groups[:NPRO]
    def pace(x):
        if x < p2_start - 30: return opt.get("pace1", 1.85)
        if x < p3_start - 60: return opt.get("pace2", 3.5)
        return opt.get("pace3", 1.9)
    cur = 0.0
    for g in groups[NPRO:]:
        cur = max(cur, g.fa + 1)
        latest = g.cert - opt.get("minfl", 10) - 3
        poss = []
        for i in range(4):
            poss.append(int(min(cur, latest + i))); cur = min(cur, latest + i) + pace(cur)
        for a, b in zip(poss, poss[1:]): assert a <= b
        assert poss[0] > g.fa and poss[-1] < g.cert, (g.tag, poss, g.fa, g.cert)
        steps[poss[0]].must += g.ins[:3]
        for i in range(1, 4): steps[poss[i]].must.append(g.ins[2 + i])
        log.append((g.tag, g.slot, g.fa, poss, g.cert, g.cert - poss[-1]))
    if opt.get("log"):
        for l in log: print(l)
    cert_at = {}
    for g in groups: cert_at.setdefault(g.cert, []).append(g.ins[-1])

    idx = 0
    p1ra = [(('wq', m), r) for m in range(4) for r in range(2)] + [(('w1', m), r) for m in range(2) for r in range(3)]
    for k in p1ra: RA[k] = V_RA + idx; idx += 1
    p2k = [(('k', m), r) for m in range(2) for r in range(2)]
    for k in p2k: RA[k] = V_RA + idx; idx += 1
    assert idx == 18
    p2v = [(('v', m), r) for m in range(4) for r in range(2)]
    for n, k in enumerate(p2v): RA[k] = V_RA + n
    p3o = [(('o', m), r) for m in range(2) for r in range(3)]
    for n, k in enumerate(p3o): RA[k] = V_RA + 8 + n
    ra_v = [Ins(f"v_sub_u32 v{RA[k]}, v{RA[k]}, v{V_RL0}") for k in p2v]
    streams.append((ra_v, p2_start - 7 - D + 1, pv_first[0] - D - 1))
    ra_o = [Ins(f"s_mov_b32 s{S_T0}, 65536"), Ins(f"s_mov_b32 s{S_T1}, 131072")]
    for (k, r) in p3o:
        t = k[1]
        add = ["0", f"s{S_T0}", f"s{S_T1}"][r]
        ra_o.append(Ins(f"v_xad_u32 v{RA[(k, r)]}, v{V_RL1}, {t*32}, {add}"))
    streams.append((ra_o, p2_start + 2, p2_start + 40))

    def l2pf(srdb, vo): return Ins(f"buffer_load_dword v{V_DUM}, v{vo}, {srd(srdb)}, 0 offen")

    T = V_T
    L = V_LANE
    P(f"s_cmp_ge_u32 s2, 256"); P("s_cbranch_scc1 L_k1_end")
    P("s_load_dwordx16 s[8:23], s[0:1], 0"); P("s_load_dwordx8 s[24:31], s[0:1], 64"); P("s_load_dwordx2 s[32:33], s[0:1], 96")
    STR = [90, 94, 8, 12, 16, 20, 24, 28]
    PM = opt.get("stamp") == 4
    if PM: STR = [90, 92, 94, 96, 98, 100, 4, 6]
    def stamp(k):
        if PM: return []
        return [Ins(f"s_memtime s[{STR[k]}:{STR[k]+1}]"), Ins(f"s_memrealtime s[{STR[k]+2}:{STR[k]+3}]")] if opt.get("stamp") else []
    def pstamp(k):
        if PM: pro.append(Ins(f"s_memtime s[{STR[k]}:{STR[k]+1}]"))
    pstamp(0)
    pro.extend(stamp(0))
    P(f"s_getpc_b64 s[{S_CODE}:{S_CODE+1}]")
    P("L_k1_pc:")
    P(f"s_mov_b32 s{S_CODE+2}, L_code_end-L_k1_pc"); P(f"s_mov_b32 s{S_CODE+3}, 0x20000")
    P(f"v_and_b32 v{L}, 63, v0"); P(f"v_lshrrev_b32 v{T+1}, 6, v0")
    P(f"v_readfirstlane_b32 s{S_W}, v{T+1}")
    P(f"s_and_b32 s{S_J}, s2, 7"); P(f"s_lshr_b32 s{S_TT}, s2, 3")
    P(f"s_and_b32 s{S_HH}, s{S_W}, 1"); P(f"s_lshr_b32 s{S_G}, s{S_W}, 1"); P(f"s_lshl_b32 s{S_W4K}, s{S_W}, 12")
    S_U = S_BAD + 1
    P(f"s_lshl_b32 s{S_U}, s{S_TT}, 2"); P(f"s_add_u32 s{S_U}, s{S_U}, s{S_W}")
    P(f"v_mov_b32 v{T+15}, 0x7f000000")
    def pf_lin(dst, n):
        P(f"s_mul_i32 s{S_T0}, s{S_U}, {n}"); P(f"v_add_u32 v{dst}, s{S_T0}, v{L}"); P(f"v_lshlrev_b32 v{dst}, 7, v{dst}")
        P(f"v_cmp_gt_u32 vcc, {n}, v{L}"); P(f"v_cndmask_b32 v{dst}, v{T+15}, v{dst}, vcc")
    pf_lin(T, 5)
    P(f"buffer_load_dword v{V_DUM}, v{T}, {srd(S_CODE)}, 0 offen")
    P(f"v_lshrrev_b32 v{T+5}, 3, v{L}"); P(f"v_and_b32 v{T+6}, 7, v{L}"); P(f"v_lshlrev_b32 v{T+6}, 4, v{T+6}"); P(f"v_lshrrev_b32 v{T+7}, 4, v{L}")
    P(f"v_mul_u32_u24 v{T+3}, 896, v{T+5}"); P(f"s_mul_i32 s{S_T0}, s{S_W}, {16*896}"); P(f"v_add3_u32 v{T+3}, v{T+3}, v{T+6}, s{S_T0}")
    P(f"v_add_u32 v{T+4}, {8*896}, v{T+3}")
    PF = 120
    pf_lin(PF + 0, 28)
    P(f"v_and_b32 v{T+9}, 0x380, v{PF}"); P(f"v_and_b32 v{T+10}, 0xfffffc00, v{PF}"); P(f"v_lshl_add_u32 v{T+10}, v{T+10}, 3, v{T+9}")
    P(f"v_cndmask_b32 v{PF}, v{T+15}, v{T+10}, vcc")
    pf_lin(PF + 1, 14)
    P(f"v_and_b32 v{T+9}, 0x180, v{PF+1}"); P(f"v_lshrrev_b32 v{T+10}, 9, v{PF+1}"); P(f"v_mul_u32_u24 v{T+10}, 3584, v{T+10}"); P(f"v_add_u32 v{T+10}, v{T+10}, v{T+9}")
    P(f"v_cndmask_b32 v{PF+1}, v{T+15}, v{T+10}, vcc")
    P(f"s_mul_i32 s{S_T1}, s{S_TT}, 57344")
    P("s_waitcnt lgkmcnt(0)")
    pstamp(1)
    def mk_srd(b, ptr, off_s, size):
        P(f"s_add_u32 s{b}, s{ptr}, s{off_s}"); P(f"s_addc_u32 s{b+1}, s{ptr+1}, 0")
        if isinstance(size, tuple): P(f"s_sub_u32 s{b+2}, {size[1]}, s{off_s}")
        else: P(f"s_mov_b32 s{b+2}, {size}")
        P(f"s_mov_b32 s{b+3}, 0x20000")
    if opt.get("stamp"): P("s_mov_b32 s34, s30"); P("s_mov_b32 s35, s31")
    mk_srd(S_X, 8, S_T1, 57344)
    P(f"s_lshl_b32 s{S_T0}, s{S_J}, 10"); mk_srd(S_WQ, 14, S_T0, ('sub', 448 * 8192))
    P(f"s_mul_i32 s{S_T0}, s{S_J}, 448"); mk_srd(S_W1, 20, S_T0, ('sub', 448 * 3584)); mk_srd(S_B1, 22, S_T0, 448)
    if opt.get("l2pf", 1) and not opt.get("pfafter"):
        pro.append(l2pf(S_WQ, PF)); pro.append(l2pf(S_W1, PF + 1))
    xl = [P(f"buffer_load_dwordx4 {vr(V_XR+4*(h*7+n),4)}, v{T+3+h}, {srd(S_X)}, 0 offen offset:{128*n}") for n in range(7) for h in range(2)]
    if opt.get("l2pf", 1) and opt.get("pfafter"):
        pro.append(l2pf(S_WQ, PF)); pro.append(l2pf(S_W1, PF + 1))
    pstamp(2)
    P(f"s_lshl_b32 s{S_T1}, s{S_W}, 7")
    P(f"v_and_b32 v{T+8}, 1, v{T+7}"); P(f"v_lshlrev_b32 v{T+8}, 5, v{T+8}"); P(f"v_xor_b32 v{T+8}, v{T+8}, v{T+6}")
    P(f"v_xor_b32 v{T+9}, 64, v{T+8}")
    P(f"v_lshlrev_b32 v{T+10}, 13, v{T+5}"); P(f"v_add_u32 v{T+10}, s{S_T1}, v{T+10}")
    for i in range(4):
        P(f"v_add_u32 v{V_DQ+i}, v{T+10}, v{T+8+(i&1)}")
        if i: P(f"v_add_u32 v{V_DQ+i}, {i*8*8192 - i*1024}, v{V_DQ+i}")
    P(f"v_mul_u32_u24 v{T+10}, 3584, v{T+5}"); P(f"v_add_u32 v{T+10}, s{S_T1}, v{T+10}")
    P(f"s_cmp_eq_u32 s{S_W}, 3"); P(f"s_cselect_b32 s{S_T0}, 0x1000000, 0")
    for i in range(4):
        P(f"v_and_b32 v{T+11}, 64, v{T+8+(i&1)}"); P(f"v_mul_lo_u32 v{T+11}, v{T+11}, s{S_T0}")
        P(f"v_add3_u32 v{V_D1+i}, v{T+10}, v{T+8+(i&1)}, v{T+11}")
        if i: P(f"v_add_u32 v{V_D1+i}, {i*8*3584 - i*1024}, v{V_D1+i}")
    P(f"v_lshlrev_b32 v{T+11}, 3, v{T+7}"); P(f"s_lshl_b32 s{S_T0}, s{S_HH}, 5"); P(f"v_add_u32 v{T+11}, s{S_T0}, v{T+11}")
    bl = [P(f"buffer_load_dwordx2 {vr(2*i,2)}, v{T+11}, {srd(S_B1)}, 0 offen offset:{64*i}") for i in range(7)]
    pstamp(3)
    P(f"v_bfe_u32 v{T+8}, v{L}, 2, 2"); P(f"v_and_b32 v{T+9}, 3, v{L}"); P(f"v_lshlrev_b32 v{T+9}, 3, v{T+9}")
    P(f"v_and_b32 v{T+10}, 1, v{T+7}"); P(f"v_lshlrev_b32 v{T+10}, 6, v{T+10}"); P(f"v_lshrrev_b32 v{T+11}, 1, v{T+8}"); P(f"v_lshl_or_b32 v{T+10}, v{T+11}, 5, v{T+10}")
    P(f"v_lshl_or_b32 v{T+9}, v{T+8}, 7, v{T+9}"); P(f"v_or_b32 v{T+9}, v{T+9}, v{T+10}")
    P(f"v_lshl_add_u32 v{T+2}, v{T+7}, 10, v{T+9}")
    P(f"v_lshl_add_u32 v{T+3}, v{T+7}, 9, v{T+9}")
    P(f"s_lshl_b32 s{S_T0}, s{S_HH}, 14"); P(f"s_lshl_b32 s{S_T1}, s{S_HH}, 5")
    for m in range(4):
        P(f"v_xor_b32 v{RA[(('wq',m),0)]}, {m*32}, v{T+2}"); P(f"v_add_u32 v{RA[(('wq',m),0)]}, s{S_T0}, v{RA[(('wq',m),0)]}")
        P(f"v_add_u32 v{RA[(('wq',m),1)]}, 65536, v{RA[(('wq',m),0)]}")
    for m in range(2):
        P(f"v_xor_b32 v{RA[(('w1',m),0)]}, {m*64}, v{T+2}"); P(f"v_xor_b32 v{RA[(('w1',m),0)]}, s{S_T1}, v{RA[(('w1',m),0)]}")
        P(f"v_add_u32 v{RA[(('w1',m),1)]}, 65536, v{RA[(('w1',m),0)]}"); P(f"v_add_u32 v{RA[(('w1',m),2)]}, 131072, v{RA[(('w1',m),0)]}")
    P(f"v_lshlrev_b32 v{V_RL0}, 9, v{T+7}"); P(f"v_add_u32 v{V_RL0}, s{S_T0}, v{V_RL0}")
    P(f"s_lshl_b32 s{S_T1}, s{S_HH}, 6"); P(f"v_xor_b32 v{V_RL1}, s{S_T1}, v{T+3}")
    P(f"v_and_b32 v{T+8}, 15, v{L}")
    P(f"v_lshrrev_b32 v{T+9}, 2, v{T+8}"); P(f"v_sub_u32 v{T+9}, 0, v{T+9}"); P(f"v_and_b32 v{T+9}, 3, v{T+9}"); P(f"v_xor_b32 v{T+9}, v{T+9}, v{T+7}")
    P(f"v_lshlrev_b32 v{T+9}, 4, v{T+9}"); P(f"v_lshl_or_b32 v{T+9}, v{T+8}, 6, v{T+9}")
    P(f"s_lshl_b32 s{S_T0}, s{S_G}, 11"); P(f"s_add_u32 s{S_T0}, s{S_T0}, {SCR_A}"); P(f"v_add_u32 v{V_XRD}, s{S_T0}, v{T+9}")
    P(f"v_lshrrev_b32 v{T+9}, 5, v{L}"); P(f"v_sub_u32 v{T+9}, 0, v{T+9}"); P(f"v_and_b32 v{T+9}, 3, v{T+9}")
    P(f"v_and_b32 v{T+10}, 3, v{L}"); P(f"v_xor_b32 v{T+9}, v{T+9}, v{T+10}"); P(f"v_lshlrev_b32 v{T+9}, 4, v{T+9}")
    P(f"v_lshl_or_b32 v{T+9}, v{T+5}, 6, v{T+9}")
    P(f"v_bfe_u32 v{T+10}, v{L}, 2, 1"); P(f"v_lshl_or_b32 v{T+9}, v{T+10}, 12, v{T+9}")
    P(f"s_lshl_b32 s{S_T0}, s{S_W}, 10"); P(f"s_add_u32 s{S_T0}, s{S_T0}, {SCR_A}"); P(f"v_add_u32 v{V_XW[0]}, s{S_T0}, v{T+9}")
    P(f"v_xor_b32 v{V_XW[1]}, 32, v{V_XW[0]}"); P(f"v_add_u32 v{V_XW[1]}, 512, v{V_XW[1]}")
    for r in range(4): P(f"v_mov_b32 v{V_ONE+r}, 0x3f803f80")
    late = []
    Q = lambda t: late.append(Ins(t))
    LT = 112
    P(f"s_lshl_b32 s{S_T0}, s{S_J}, 20"); P(f"s_add_u32 s{S_T0}, s{S_T0}, {1536*512}")
    mk_srd(S_K, 10, S_T0, 262144); mk_srd(S_V, 12, S_T0, 262144)
    P(f"s_mul_i32 s{S_T0}, s{S_J}, 458752"); mk_srd(S_WO, 16, S_T0, 458752)
    P(f"s_mul_i32 s{S_T0}, s{S_J}, 200704"); mk_srd(S_W2, 24, S_T0, 200704)
    P(f"s_mul_i32 s{S_T0}, s{S_J}, {PLANE}"); mk_srd(S_WS, 32, S_T0, 9 * PLANE)
    P(f"s_mov_b32 s{S_QC}, {f32(math.log2(math.e)/16)}")
    C1 = -2 * math.log2(math.e) * math.sqrt(2 / math.pi)
    P(f"s_mov_b32 s{S_C3}, {f32(C1*0.044715)}"); P(f"v_mov_b32 v{V_C1}, {f32(C1)}")
    P(f"s_lshl_b32 s{S_T1}, s{S_W}, 7")
    P(f"v_lshlrev_b32 v{T+10}, 9, v{T+5}"); P(f"v_add_u32 v{T+10}, s{S_T1}, v{T+10}")
    P(f"v_lshlrev_b32 v{T+11}, 4, v{T+7}"); P(f"v_xor_b32 v{T+11}, v{T+11}, v{T+6}")
    for i in range(4):
        P(f"v_xad_u32 v{V_DK+i}, v{T+11}, {64*(i&1)}, v{T+10}")
        if i: P(f"v_add_u32 v{V_DK+i}, {i*8*512 - i*1024}, v{V_DK+i}")
    P(f"v_lshlrev_b32 v{T+11}, 5, v{T+7}"); P(f"v_xor_b32 v{T+11}, v{T+11}, v{T+6}")
    P(f"v_add_u32 v{V_DV}, v{T+10}, v{T+11}")
    for i in range(1, 4): P(f"v_add_u32 v{V_DV+i}, {i*8*512 - i*1024}, v{V_DV}")
    P(f"v_mul_u32_u24 v{T+10}, 896, v{T+5}"); P(f"s_mul_i32 s{S_T0}, s{S_W}, 28672"); P(f"v_add3_u32 v{V_DO}, v{T+10}, v{T+11}, s{S_T0}")
    for i in range(1, 4): P(f"v_add_u32 v{V_DO+i}, {i*8*896 - i*1024}, v{V_DO}")
    P(f"v_lshrrev_b32 v{T+9}, 1, v{T+8}"); P(f"v_xor_b32 v{T+9}, v{T+9}, v{T+7}"); P(f"v_lshlrev_b32 v{T+9}, 4, v{T+9}")
    P(f"v_lshl_or_b32 v{RA[(('k',0),0)]}, v{T+8}, 7, v{T+9}"); P(f"v_xor_b32 v{RA[(('k',1),0)]}, 64, v{RA[(('k',0),0)]}")
    for m in range(2): P(f"v_add_u32 v{RA[(('k',m),1)]}, 65536, v{RA[(('k',m),0)]}")
    P(f"v_lshlrev_b32 v{T+9}, 4, v{L}")
    P(f"s_lshl_b32 s{S_T0}, s{S_G}, 10"); P(f"s_add_u32 s{S_T0}, s{S_T0}, {SCR_A}"); P(f"v_add_u32 v{V_HR}, s{S_T0}, v{T+9}")
    P(f"s_lshl_b32 s{S_T0}, s{S_HH}, 3"); P(f"v_add_u32 v{V_HW}, s{S_T0}, v{V_HR}")
    P(f"s_add_u32 s{S_T0}, s{S_W4K}, {SCR_B}"); P(f"v_add_u32 v{V_OW}, s{S_T0}, v{T+9}")
    P(f"s_lshl_b32 s{S_T0}, s{S_G}, 13"); P(f"s_add_u32 s{S_T0}, s{S_T0}, {SCR_B}"); P(f"v_add_u32 v{V_OR}, s{S_T0}, v{T+9}")
    P(f"s_mul_i32 s{S_T0}, s{S_U}, 14336"); P(f"v_add_u32 v{V_ST}, s{S_T0}, v{T+9}")
    if opt.get("oob"):
        for b in (S_WQ, S_W1, S_K, S_V, S_WO, S_W2): P(f"s_mov_b32 s{b+2}, 0")
    pstamp(4)
    pro.append(wait_vm(xl[-1]))
    pstamp(5)
    pro.extend(stamp(1))
    rest = sum([g.ins for g in pro_groups], [])
    st = []
    for a in range(4): st.append(Ins(f"v_mov_b32 v{T+8+a}, 0"))
    for n in range(7):
        for dw in range(4):
            for h in range(2):
                x = V_XR + (h * 7 + n) * 4 + dw
                st.append(Ins(f"v_dot2_f32_bf16 v{T+8+h}, v{x}, v{V_ONE}, v{T+8+h}"))
                st.append(Ins(f"v_dot2_f32_bf16 v{T+10+h}, v{x}, v{x}, v{T+10+h}"))
    for mod in ("quad_perm:[1,0,3,2]", "quad_perm:[2,3,0,1]", "row_half_mirror"):
        for a in range(4): st.append(Ins(f"v_add_f32_dpp v{T+8+a}, v{T+8+a}, v{T+8+a} {mod} row_mask:0xf bank_mask:0xf"))
    for a in range(4): st.append(Ins(f"v_mul_f32 v{T+8+a}, {f32(1/448)}, v{T+8+a}"))
    for h in range(2): st.append(Ins(f"v_fma_f32 v{T+10+h}, -v{T+8+h}, v{T+8+h}, v{T+10+h}"))
    for h in range(2): st.append(Ins(f"v_max_f32 v{T+10+h}, 0, v{T+10+h}"))
    for h in range(2): st.append(Ins(f"v_add_f32 v{T+10+h}, {f32(1e-5)}, v{T+10+h}"))
    for h in range(2): st.append(Ins(f"v_rsq_f32 v{V_RSTD[h]}, v{T+10+h}"))
    for h in range(2): st.append(Ins(f"v_mul_f32 v{V_NB[h]}, v{T+8+h}, v{V_RSTD[h]}"))
    for h in range(2): st.append(Ins(f"v_sub_f32 v{V_NB[h]}, 0, v{V_NB[h]}"))
    st += ln_piece(0)
    st.append(wait_vm(bl[-1]))
    for i in range(7):
        st += [Ins(f"v_lshlrev_b32 v{T+8}, 16, v{2*i}"), Ins(f"v_and_b32 v{T+9}, 0xffff0000, v{2*i}"),
               Ins(f"v_lshlrev_b32 v{T+10}, 16, v{2*i+1}"), Ins(f"v_and_b32 v{T+11}, 0xffff0000, v{2*i+1}")]
        for tg in range(2):
            for r in range(4): st.append(Ins(f"v_accvgpr_write_b32 a{A_H + (i*2+tg)*4 + r}, v{T+8+r}"))
    ndma = max(1, sum(1 for i in rest if i.kind == 'vmem'))
    every = opt.get("proevery", max(1, len(st) // ndma))
    for k, i in enumerate(st):
        pro.append(i)
        if k % every == every - 1:
            while rest:
                x = rest.pop(0); pro.append(x)
                if x.kind == 'vmem': break
    pro.extend(rest)
    if opt.get("l2pf", 1):
        def pf_late(n, srds, at):
            l = [Ins(f"s_mul_i32 s{S_T0}, s{S_U}, {n}"), Ins(f"v_add_u32 v{V_T+15}, s{S_T0}, v{L}"), Ins(f"v_lshlrev_b32 v{V_T+15}, 7, v{V_T+15}"),
                 Ins(f"v_cmp_gt_u32 vcc, {n}, v{L}"), Ins(f"v_mov_b32 v{V_DUM2}, 0x7f000000"), Ins(f"v_cndmask_b32 v{V_T+15}, v{V_DUM2}, v{V_T+15}, vcc")]
            l += [l2pf(b, V_T + 15) for b in srds]
            streams.append((l, at, at + 8))
        V_DUM2 = V_T + 11
        pf_late(16, [S_K, S_V], opt.get("pfkv", p1_first[4]))
        pf_late(13, [S_W2], opt.get("pfw2", p1_first[9]))
        pf_late(28, [S_WO], opt.get("pfwo", p1_first[11]))
    pstamp(6)
    pro.append(wait_lgkm(xw_ins[0])); pro.append(wait_vm(cert_at.get(-1, [])))
    P("s_barrier")
    pstamp(7)
    rd0 = xb_reads(0); pro.extend(rd0); steps[0].needs += rd0

    for st in steps: st.reads = sum([make_reads(r) for r in st.reads], [])
    for si in range(D): pro.extend(steps[si].reads)
    S = []
    for (lst, e, dl) in streams:
        for i in lst:
            if i.earliest is None: i.earliest = e
            if i.deadline is None: i.deadline = dl + 1
        S.append(list(lst))
    CAP = opt.get("cap", 4)
    seq = list(pro) + stamp(2)
    barset = set(barriers)
    loads = []
    for si, st in enumerate(steps):
        toks = list(st.needs)
        if st.reads: toks.append(st.reads[-1])
        if si % 2 == 0 and si + 1 < nsteps and steps[si + 1].reads: toks.append(steps[si + 1].reads[-1])
        if toks: seq.append(wait_lgkm(toks))
        F = []
        if si + D < nsteps: F += steps[si + D].reads
        F += st.must
        load = sum(i.cost for i in F) + (2 if si in barset else 0) + 0.5
        def take(q):
            i = q.pop(0); F.append(i); return i.cost
        act = [q for q in S if q and q[0].earliest <= si]
        for q in act:
            dl = None
            n_now = 0; cum = 0
            for k, i in enumerate(q):
                if i.earliest > si: break
                left = i.deadline - si
                assert left >= 1, f"missed deadline {i.text} at step {si}"
                need = math.ceil((k + 1) / left) if left > 1 else k + 1
                if left == 1 or opt.get("even", 1): n_now = max(n_now, need if left > 1 and (k + 1) / left >= 1 else (k + 1 if left == 1 else 0))
            for _ in range(n_now):
                if q and q[0].earliest <= si: load += take(q)
        while load < CAP:
            act = [q for q in S if q and q[0].earliest <= si and load + q[0].cost <= CAP + 0.5]
            if not act: break
            q = min(act, key=lambda q: q[0].deadline)
            load += take(q)
        loads.append(load)
        tot = sum(i.cost for i in F) + (2 if si in barset else 0)
        g1 = []; c = 0
        while F and c + F[0].cost <= (tot + 1) // 2:
            c += F[0].cost; g1.append(F.pop(0))
        seq.append(st.mf[0]); seq += g1; seq.append(st.mf[1]); seq += F
        if si in barset:
            if bar_extra.get(si): seq.append(wait_lgkm(bar_extra[si]))
            if cert_at.get(si): seq.append(wait_vm(cert_at[si]))

            seq.append(Ins("s_barrier"))
        stp = {p2_start - 1: 3, p3_start - 1: 4, o_first[0] - 1: 5, nsteps - 1: 6}
        if opt.get("stamp") == 2: stp = {p1_first[2] - 1: 3, p1_first[5] - 1: 4, p1_first[9] - 1: 5, p1_first[13] - 1: 6}
        if opt.get("stamp") == 3: stp = {p2_start - 1: 3, pv_first[0] - 1: 4, pv_end[4] - 1: 5, pv_end[12] - 1: 6}
        if si in stp: seq += stamp(stp[si])
    assert all(not q for q in S), [q[0].text for q in S if q]
    seq += tail
    if opt.get("stamp"):
        seq.append(Ins("s_waitcnt vmcnt(0)"))
        seq += stamp(7); seq.append(Ins("s_waitcnt lgkmcnt(0)"))
        for k in range(8): seq += [Ins(f"v_mov_b32 v{2*k}, s{STR[k]}"), Ins(f"v_mov_b32 v{2*k+1}, s{STR[k]+(0 if PM else 2)}")]
        seq += [Ins(f"s_lshl_b32 s{S_T0}, s2, 8"), Ins(f"s_lshl_b32 s{S_T1}, s{S_W}, 6"),
                Ins(f"s_add_u32 s{S_T0}, s{S_T0}, s{S_T1}"), Ins(f"s_add_u32 s36, s32, {64<<20}"), Ins("s_addc_u32 s37, s33, 0"),
                Ins("s_mov_b32 s38, 65536"), Ins("s_mov_b32 s39, 0x20000"), Ins(f"v_mov_b32 v20, s{S_T0}")]
        for k in range(4): seq.append(Ins(f"buffer_store_dwordx4 v[{4*k}:{4*k+3}], v20, s[36:39], 0 offen offset:{16*k}"))
        if opt.get("dbgwg") is not None:
            for k in range(7, 0, -1):
                seq += [Ins(f"v_sub_u32 v{2*k}, v{2*k}, v0"), Ins(f"v_sub_u32 v{2*k+1}, v{2*k+1}, v1")]
            seq += [Ins(f"s_cmp_eq_u32 s{S_U}, {(opt['dbgwg']>>3)*4}"), Ins("s_cselect_b32 s38, 64, 0"), Ins(f"s_cmp_eq_u32 s{S_J}, {opt['dbgwg']&7}"), Ins("s_cselect_b32 s38, s38, 0"),
                    Ins("s_mov_b32 s36, s34"), Ins("s_mov_b32 s37, s35"), Ins("v_mov_b32 v20, 0")]
            for k in range(4): seq.append(Ins(f"buffer_store_dwordx4 v[{4*k}:{4*k+3}], v20, s[36:39], 0 offen offset:{16*k}"))
    seq.append(Ins("L_k1_end:")); seq.append(Ins("s_endpgm"))
    seq = resolve_waits(seq)
    check_data_waits([i for i in seq if not (i.wr == [('v', V_DUM)])])
    verify_lds(seq)
    own = {id(i): g for g in groups for i in g.ins}
    curg = None
    for i in seq:
        g = own.get(id(i))
        if g is None: continue
        if i.kind == 'salu': curg = g
        else: assert curg is g, ("m0 clobber", g.tag)
    if opt.get("nodma"): seq = [i for i in seq if not (i.kind == 'vmem' and ' lds' in i.text and i.pos > len(pro))]
    if opt.get("novmwait"):
        for i in seq:
            if i.op == 's_waitcnt' and i.pos > len(pro) and 'vmcnt' in i.text and i.pos < len(seq) - 60:
                i.text = re.sub(r'vmcnt\(\d+\)', 'vmcnt(63)', i.text)
    if opt.get("nobar"): seq = [i for i in seq if not (i.op == 's_barrier' and i.pos > len(pro))]
    seq = pad_hazards(seq)
    if opt.get("log"):
        def avg(a, b): return sum(loads[a:b]) / (b - a)
        print("avg load p1 %.2f p2 %.2f ffn2 %.2f oproj %.2f" % (avg(0, p2_start), avg(p2_start, p3_start), avg(p3_start, o_first[0]), avg(o_first[0], nsteps)))
        print("n instr", len(seq), "nops", sum(1 for i in seq if i.note == 'hz'), "waits", sum(1 for i in seq if i.op == 's_waitcnt'), "barriers", sum(1 for i in seq if i.op == 's_barrier'))
    return seq

def gen_k2(opt):
    q = []
    P = lambda t, **k: (q.append(Ins(t, **k)), q[-1])[1]
    P("s_cmp_ge_u32 s2, 448"); P("s_cbranch_scc1 L_k2_end")
    P("s_load_dwordx2 s[4:5], s[0:1], 96"); P("s_load_dwordx2 s[6:7], s[0:1], 0"); P("s_load_dwordx4 s[8:11], s[0:1], 72")
    if opt.get("stamp"): P("s_memrealtime s[60:61]")
    P("s_lshl_b32 s3, s2, 12"); P("v_lshlrev_b32 v1, 4, v0"); P("v_add_u32 v1, s3, v1")
    P("v_lshrrev_b32 v2, 6, v0"); P("v_readfirstlane_b32 s30, v2")
    P("s_waitcnt lgkmcnt(0)")
    P("s_mov_b32 s12, s4"); P("s_mov_b32 s13, s5"); P(f"s_mov_b32 s14, {16*PLANE}"); P("s_mov_b32 s15, 0x20000")
    order = list(range(8, 16)) + list(range(8))
    ld = {}
    for p in order:
        P(f"s_mov_b32 s{40+p}, {p*PLANE}")
        ld[p] = P(f"buffer_load_dwordx4 v[{16+4*p}:{19+4*p}], v1, s[12:15], s{40+p} offen")
        if p == 15:
            P("s_lshl_b32 s31, s2, 2"); P("s_add_u32 s31, s31, s30")
            P("s_and_b32 s32, s31, 1"); P("s_lshr_b32 s33, s31, 1")
            P(f"s_mul_hi_u32 s34, s33, {(2**32 + 6)//7}"); P("s_mul_i32 s35, s34, 7"); P("s_sub_u32 s35, s33, s35")
            P("s_and_b32 s36, s34, 1"); P("s_lshr_b32 s37, s34, 1")
            P("s_lshl_b32 s37, s37, 5"); P("s_lshl_b32 s32, s32, 4"); P("s_add_u32 s37, s37, s32")
            P("s_lshl_b32 s35, s35, 7"); P("s_lshl_b32 s36, s36, 6"); P("s_add_u32 s35, s35, s36")
            P("v_and_b32 v3, 15, v0"); P("v_add_u32 v3, s37, v3"); P("v_mul_u32_u24 v3, 896, v3")
            P("v_bfe_u32 v4, v0, 4, 2"); P("v_lshlrev_b32 v4, 3, v4"); P("v_add_u32 v4, s35, v4"); P("v_add_u32 v3, v3, v4")
            P("s_mov_b32 s16, s6"); P("s_mov_b32 s17, s7"); P(f"s_mov_b32 s18, {PLANE}"); P("s_mov_b32 s19, 0x20000")
            P("s_mov_b32 s20, s8"); P("s_mov_b32 s21, s9"); P("s_mov_b32 s22, 896"); P("s_mov_b32 s23, 0x20000")
            P("s_mov_b32 s24, s10"); P("s_mov_b32 s25, s11"); P(f"s_mov_b32 s26, {PLANE}"); P("s_mov_b32 s27, 0x20000")
            b2a = P("buffer_load_dwordx2 v[8:9], v4, s[20:23], 0 offen"); b2b = P("buffer_load_dwordx2 v[10:11], v4, s[20:23], 0 offen offset:32")
            xa = P("buffer_load_dwordx2 v[12:13], v3, s[16:19], 0 offen"); xb = P("buffer_load_dwordx2 v[14:15], v3, s[16:19], 0 offen offset:32")
    P("s_mov_b32 s28, 0x3f80"); P("s_mov_b32 s29, 0x3f800000")
    B = 80; Sx = 88
    def accum(dst, src, first):
        for dw in range(4):
            for h in range(2):
                P(f"v_dot2_f32_bf16 v{dst+dw*2+h}, v{src+dw}, s{28+h}, {'0' if first else 'v%d' % (dst+dw*2+h)}")
    for n, p in enumerate(range(8, 16)):
        q.append(wait_vm(ld[p])); accum(B, 16 + 4 * p, n == 0)
    q.append(wait_vm(b2b)); accum(B, 8, False)
    G = 96
    for e in range(8): P(f"v_mul_f32 v{G+e}, {f32(-math.log2(math.e))}, v{B+e}")
    for e in range(8): P(f"v_exp_f32 v{G+e}, v{G+e}")
    for e in range(8): P(f"v_add_f32 v{G+e}, 1.0, v{G+e}")
    for e in range(8): P(f"v_rcp_f32 v{G+e}, v{G+e}")
    for e in range(8): P(f"v_mul_f32 v{G+e}, v{G+e}, v{B+e}")
    for n, p in enumerate(range(8)):
        q.append(wait_vm(ld[p])); accum(Sx, 16 + 4 * p, n == 0)
    for e in range(8): P(f"v_mul_f32 v{Sx+e}, v{Sx+e}, v{G+e}")
    accum(Sx, 12, False)
    for dw in range(4): P(f"v_cvt_pk_bf16_f32 v{4+dw}, v{Sx+2*dw}, v{Sx+2*dw+1}")
    P("buffer_store_dwordx2 v[4:5], v3, s[24:27], 0 offen"); P("buffer_store_dwordx2 v[6:7], v3, s[24:27], 0 offen offset:32")
    if opt.get("stamp"):
        P("s_waitcnt vmcnt(0)"); P("s_memrealtime s[62:63]"); P("s_waitcnt lgkmcnt(0)")
        P("v_mov_b32 v4, s60"); P("v_mov_b32 v5, s62"); P("s_lshl_b32 s31, s31, 3"); P("v_mov_b32 v6, s31")
        P(f"s_add_u32 s12, s4, {(64<<20) + 65536}"); P("s_addc_u32 s13, s5, 0"); P("s_mov_b32 s14, 65536")
        P("buffer_store_dwordx2 v[4:5], v6, s[12:15], 0 offen")
    P("L_k2_end:"); P("s_endpgm")
    q = resolve_waits(q); check_data_waits(q); q = pad_hazards(q)
    return q

def kd(name, vg, acc):
    return f""".amdhsa_kernel {name}
  .amdhsa_next_free_vgpr {vg}
  .amdhsa_next_free_sgpr 102
  .amdhsa_accum_offset {acc}
  .amdhsa_group_segment_fixed_size 0
  .amdhsa_kernarg_size 104
  .amdhsa_user_sgpr_count 2
  .amdhsa_user_sgpr_kernarg_segment_ptr 1
  .amdhsa_system_sgpr_workgroup_id_x 1
.end_amdhsa_kernel
"""
def build(opt):
    ref = open(f"cdna_kernels/{NAME}.s.ref").read().split("\n")
    hdr = [l for l in ref[:16] if l.startswith(";") and "@launch" not in l and "Override" not in l and "grid=ceil" not in l]
    out = hdr + ["; @launch kernel=fused_attn_ffn_kernel grid=(256,1,1) block=(256,1,1) lds=163840",
                 "; @launch kernel=reduce_gate_kernel grid=(448,1,1) block=(256,1,1) lds=0",
                 '.amdgcn_target "amdgcn-amd-amdhsa--gfx950"', ".text"]
    for nm, seq in (("fused_attn_ffn_kernel", gen_k1(opt)), ("reduce_gate_kernel", gen_k2(opt))):
        out += [f".globl {nm}", ".p2align 8", f".type {nm},@function", f"{nm}:"]
        out += [(i.text if i.label else "    " + i.text) for i in seq]
    out += ["L_code_end:", '.section .rodata,"a"', ".p2align 6", kd("fused_attn_ffn_kernel", 512, 256), ".p2align 6", kd("reduce_gate_kernel", 104, 104)]
    return "\n".join(out) + "\n"

if __name__ == "__main__":
    opt = dict(log=0)
    for a in sys.argv[2:]:
        k, v = a.split("=")
        try: v = int(v)
        except ValueError:
            try: v = float(v)
            except ValueError: v = v.replace("+", " ")
        opt[k] = v
    txt = build(opt)
    open(sys.argv[1] if len(sys.argv) > 1 else f"cdna_kernels/{NAME}.s", "w").write(txt)
```

```python
import sys, math, struct
from asmlib import *

NAME = "recurrent_scan__sliding_block_cached__dense_activation_gelu__prompt"
PLANE = 2048 * 448 * 2
def f32(x): return "0x%08x" % struct.unpack("<I", struct.pack("<f", x))[0]

S_X, S_WQ, S_W1, S_K, S_V, S_WO, S_W2, S_WS, S_B1, S_CODE = 36, 40, 44, 48, 52, 56, 60, 64, 68, 72
S_W, S_HH, S_G, S_J, S_TT, S_W4K, S_SOFF, S_STO, S_QC, S_C3, S_T0, S_T1, S_BAD = 76, 77, 78, 79, 80, 81, 82, 83, 84, 85, 86, 87, 88
def srd(b): return f"s[{b}:{b+3}]"
V_ACC = 0
V_XR = 128
V_S = 128
V_P = 160
V_L = 168
V_NM = 176
V_ONE = 184
V_T = 188
V_DQ, V_D1, V_DK, V_DV, V_DO = 204, 208, 212, 216, 220
V_RA = 224
V_XW0, V_XRD, V_HW, V_HR, V_OW, V_OR, V_ST, V_RSTD0, V_NB0, V_C1, V_RL0, V_RL1, V_LANE, V_DUM = range(242, 256)
V_XW = [V_XW0, V_T + 12]; V_RSTD = [V_RSTD0, V_T + 13]; V_NB = [V_NB0, V_T + 14]
A_RING, A_XB, A_H, A_Q = 0, 32, 48, 104
def a_of(kap, tg):
    idx = kap * 2 + tg
    if idx < 22: return 168 + 4 * idx
    if idx < 26: return 32 + 4 * (idx - 22)
    return 104 + 4 * (idx - 26)
SLOT = 16384
SCR_A, SCR_B = 9 * SLOT, 8 * SLOT
D = 6

def vr(b, n): return f"v[{b}:{b+n-1}]"
def ar(b, n): return f"a[{b}:{b+n-1}]"
MF = "v_mfma_f32_16x16x32_bf16"

class Step:
    def __init__(s, mf, reads=(), needs=(), group=None, name=""):
        s.mf = mf; s.reads = list(reads); s.needs = list(needs); s.group = group; s.name = name
        s.must = []
        s.fill = []

class Group:
    def __init__(g, kind, srdb, vo, soff, slot=None, tag=None):
        g.kind = kind; g.srdb = srdb; g.vo = vo; g.soff = soff; g.slot = slot; g.tag = tag
        g.first_read = None; g.last_use = None; g.ins = None

def gen_k1(opt):
    dbg = opt.get("dbg", 0)
    pro = []
    P = lambda t, **k: (pro.append(Ins(t, **k)), pro[-1])[1]
    steps = []; groups = []; barriers = []; streams = []
    fr = [0]
    def frag():
        b = A_RING + 4 * (fr[0] % 8); fr[0] += 1; return b

    def lds_r(rs, tag, **k): return dict(rw='r', ranges=rs, tag=tag, **k)
    def lds_w(rs, tag, **k): return dict(rw='w', ranges=rs, tag=tag, **k)

    class Rd:
        def __init__(r, kind, dst, grps, pat, off, half_off):
            r.kind = kind; r.dst = dst; r.grps = grps; r.pat = pat; r.off = off; r.half_off = half_off
    RA = {}
    def ra(pat, region): return RA[(pat, region)]
    def make_reads(r):
        g0 = r.grps[0]
        base = g0.slot * SLOT + r.off
        region = base // 65536; imm = base % 65536
        rs = [(g.slot * SLOT + (r.off // 4096) * 4096, g.slot * SLOT + (r.off // 4096) * 4096 + 4096) for g in r.grps]
        outl = []
        if len(r.grps) == 2: assert r.grps[1].slot == g0.slot + 1
        def tagged(text):
            i = Ins(text); i.lds = lds_r(rs[:1], g0.tag)
            return i
        if r.kind == 'tr':
            assert imm + r.half_off < 65536
            a = tagged(f"ds_read_b64_tr_b16 {ar(r.dst,2)}, v{ra(r.pat, region)} offset:{imm}")
            b = tagged(f"ds_read_b64_tr_b16 {ar(r.dst+2,2)}, v{ra(r.pat, region)} offset:{imm + r.half_off}")
            outl = [a, b]
        else:
            outl = [tagged(f"ds_read_b128 {ar(r.dst,4)}, v{ra(r.pat, region)} offset:{imm}")]
        if len(r.grps) == 2:
            for i in outl: i.lds['ranges'] = rs
        return outl

    xw_ins = {}; xb_ins = {}
    p1_first = []
    for ks in range(14):
        sl = 3 * (ks % 3)
        gq0 = Group('wq', S_WQ, V_DQ, ks * 32 * 8192, slot=sl, tag=('wq', ks))
        gq1 = Group('wq', S_WQ, V_DQ, ks * 32 * 8192 + 512, slot=sl + 1, tag=('wq', ks))
        g1 = Group('w1', S_W1, V_D1, ks * 32 * 3584, slot=sl + 2, tag=('w1', ks))
        groups += [gq0, gq1, g1]
        p1_first.append(len(steps))
        xb = [A_XB + (ks % 2) * 8 + tg * 4 for tg in range(2)]
        for mb in range(16):
            f = frag()
            mfs = []
            for tg in range(2):
                acc = V_ACC + (mb * 2 + tg) * 4
                c = "0" if ks == 0 else vr(acc, 4)
                mfs.append(Ins(f"{MF} {vr(acc,4)}, {ar(f,4)}, {ar(xb[tg],4)}, {c}"))
            steps.append(Step(mfs, [Rd('tr', f, [gq0, gq1], ('wq', mb % 4), (mb // 4) * 4096, 512)], group=[gq0, gq1], name=f"q{ks}.{mb}"))
        for i in range(7):
            f = frag()
            mfs = []
            for tg in range(2):
                acc = A_H + (i * 2 + tg) * 4
                mfs.append(Ins(f"{MF} {ar(acc,4)}, {ar(f,4)}, {ar(xb[tg],4)}, {ar(acc,4)}"))
            steps.append(Step(mfs, [Rd('tr', f, [g1], ('w1', i % 2), (i // 2) * 4096, 512)], group=[g1], name=f"h{ks}.{i}"))
    p2_start = len(steps)
    p1_first.append(p2_start)
    for ks in range(14): barriers.append(p1_first[ks + 1] - D - 1)

    def ln_piece(n):
        st = []
        t = V_T
        ws_ = []
        base = SCR_A + (n % 2) * 8192
        for h in range(2):
            for dw in range(4):
                x = V_XR + (h * 7 + n) * 4 + dw
                st.append(Ins(f"v_lshlrev_b32 v{t+(dw%2)*2}, 16, v{x}"))
                st.append(Ins(f"v_and_b32 v{t+(dw%2)*2+1}, 0xffff0000, v{x}"))
                st.append(Ins(f"v_fma_f32 v{t+(dw%2)*2}, v{t+(dw%2)*2}, v{V_RSTD[h]}, v{V_NB[h]}"))
                st.append(Ins(f"v_fma_f32 v{t+(dw%2)*2+1}, v{t+(dw%2)*2+1}, v{V_RSTD[h]}, v{V_NB[h]}"))
                st.append(Ins(f"v_cvt_pk_bf16_f32 v{x}, v{t+(dw%2)*2}, v{t+(dw%2)*2+1}"))
            w = Ins(f"ds_write_b128 v{V_XW[h]}, {vr(V_XR + (h*7+n)*4, 4)} offset:{(n%2)*8192}", lds=lds_w([(base, base + 8192)], ('xn', n)))
            st.append(w); ws_.append(w)
        xw_ins[n] = ws_
        return st
    def xb_reads(p):
        n = p // 2
        base = SCR_A + (n % 2) * 8192
        l = [Ins(f"ds_read_b128 {ar(A_XB + (p%2)*8 + tg*4, 4)}, v{V_XRD} offset:{(n%2)*8192 + (p%2)*4096 + tg*1024}", lds=lds_r([(base, base + 8192)], ('xn', n))) for tg in range(2)]
        xb_ins[p] = l
        return l
    bar_extra = {}
    for n in range(1, 7):
        e = 0 if n == 1 else barriers[2 * n - 3] + 1
        st = ln_piece(n)
        streams.append((st, e, barriers[2 * n - 1] - 1))
        bar_extra.setdefault(barriers[2 * n - 1], []).extend(xw_ins[n])
    for p in range(1, 14):
        rd = xb_reads(p)
        steps[barriers[p - 1] + 1].must += rd
        steps[p1_first[p]].needs += rd

    gK = [Group('k', S_K, V_DK, j * 16384, tag=('k', j)) for j in range(16)]
    gV = [Group('v', S_V, V_DV, j * 16384, tag=('v', j)) for j in range(16)]
    s_first = {}; s_end = {}; pv_first = {}; pv_end = {}
    def s_steps(j):
        s_first[j] = len(steps)
        groups.append(gK[j])
        for kk in range(8):
            for kb in range(2):
                f = frag(); mfs = []
                for tg in range(2):
                    acc = V_S + (j % 2) * 16 + (kb * 2 + tg) * 4
                    c = vr(acc, 4) if kk else ("0" if j < 2 else vr(V_NM + tg * 4, 4))
                    mfs.append(Ins(f"{MF} {vr(acc,4)}, {ar(f,4)}, {ar(A_Q + (kk*2+tg)*4, 4)}, {c}"))
                steps.append(Step(mfs, [Rd('b128', f, [gK[j]], ('k', kk % 2), (kk // 2) * 4096 + kb * 2048, 0)], group=[gK[j]], name=f"s{j}.{kk}.{kb}"))
        s_end[j] = len(steps)
    def pbuf(j): return V_P if j < 15 else V_S
    def pv_steps(j):
        V_P = pbuf(j)
        pv_first[j] = len(steps)
        groups.append(gV[j])
        for db in range(16):
            f = frag(); mfs = []
            for tg in range(2):
                acc = V_ACC + (db * 2 + tg) * 4
                c = vr(acc, 4) if j else "0"
                mfs.append(Ins(f"{MF} {vr(acc,4)}, {ar(f,4)}, {vr(V_P + tg*4, 4)}, {c}"))
            steps.append(Step(mfs, [Rd('tr', f, [gV[j]], ('v', db % 4), (db // 4) * 4096, 2048)], group=[gV[j]], name=f"pv{j}.{db}"))
        mfs = [Ins(f"{MF} {vr(V_L+tg*4,4)}, {vr(V_ONE,4)}, {vr(V_P + tg*4, 4)}, {vr(V_L+tg*4,4) if j else '0'}") for tg in range(2)]
        steps.append(Step(mfs, name=f"rs{j}"))
        pv_end[j] = len(steps)
    s_steps(0)
    for j in range(16):
        if j < 15: s_steps(j + 1)
        pv_steps(j)
    p3_start = len(steps)
    barriers.append(s_first[1] - D - 1)
    p2bar = {}
    for j in range(16):
        p2bar[j] = pv_end[j] - D - 1
        barriers.append(p2bar[j])

    q13 = p1_first[13]
    qfin = []
    for kk in range(8):
        for tg in range(2):
            t = V_T + ((kk * 2 + tg) % 2) * 4
            st = []
            a0 = V_ACC + ((2 * kk) * 2 + tg) * 4; a1 = V_ACC + ((2 * kk + 1) * 2 + tg) * 4
            for r in range(4): st.append(Ins(f"v_mul_f32 v{a0+r}, s{S_QC}, v{a0+r}"))
            for r in range(4): st.append(Ins(f"v_mul_f32 v{a1+r}, s{S_QC}, v{a1+r}"))
            st.append(Ins(f"v_cvt_pk_bf16_f32 v{t}, v{a0}, v{a0+1}")); st.append(Ins(f"v_cvt_pk_bf16_f32 v{t+1}, v{a0+2}, v{a0+3}"))
            st.append(Ins(f"v_cvt_pk_bf16_f32 v{t+2}, v{a1}, v{a1+1}")); st.append(Ins(f"v_cvt_pk_bf16_f32 v{t+3}, v{a1+2}, v{a1+3}"))
            st2 = [Ins(f"v_permlane32_swap_b32 v{t}, v{t+2}"), Ins(f"v_permlane32_swap_b32 v{t+1}, v{t+3}")]
            st3 = [Ins(f"v_permlane16_swap_b32 v{t}, v{t+2}"), Ins(f"v_permlane16_swap_b32 v{t+1}, v{t+3}")]
            st4 = [Ins(f"v_accvgpr_write_b32 a{A_Q + (kk*2+tg)*4 + r}, v{t+r}") for r in range(4)]
            for i in st + st2 + st3 + st4:
                i.earliest = q13 + 2 * kk + 2; i.deadline = s_first[0] + 2 * kk
            qfin.append((st, st2, st3, st4))
    qs = []
    for kk in range(8):
        A, B = qfin[2 * kk], qfin[2 * kk + 1]
        qs += A[0] + B[0][:2] + A[1] + B[0][2:4] + A[2] + B[0][4:6] + A[3] + B[0][6:]
        nxt = []
        qs += [Ins("s_nop 1")] if False else []
        qs += B[1]; qs += B[2]; qs += B[3]
    streams.append((qs, None, None))

    for j in range(16):
        sb = V_S + (j % 2) * 16
        ex = []
        if j == 0:
            for tg in range(2):
                v = [sb + (kb * 2 + tg) * 4 + r for kb in range(2) for r in range(4)]
                m = V_T + 8 + tg * 2
                ex += [Ins(f"v_max3_f32 v{m}, v{v[0]}, v{v[1]}, v{v[2]}"), Ins(f"v_max3_f32 v{m}, v{m}, v{v[3]}, v{v[4]}"),
                       Ins(f"v_max3_f32 v{m}, v{m}, v{v[5]}, v{v[6]}"), Ins(f"v_max_f32 v{m}, v{m}, v{v[7]}")]
            for sw in ("v_permlane32_swap_b32", "v_permlane16_swap_b32"):
                for tg in range(2): ex.append(Ins(f"v_mov_b32 v{V_T+8+tg*2+1}, v{V_T+8+tg*2}"))
                for tg in range(2): ex.append(Ins(f"{sw} v{V_T+8+tg*2}, v{V_T+8+tg*2+1}"))
                for tg in range(2): ex.append(Ins(f"v_max_f32 v{V_T+8+tg*2}, v{V_T+8+tg*2}, v{V_T+8+tg*2+1}"))
            for tg in range(2):
                for r in range(4): ex.append(Ins(f"v_sub_f32 v{V_NM+tg*4+r}, {f32(-opt.get('moff', 32.0))}, v{V_T+8+tg*2}"))
        if j < 2:
            for kb in range(2):
                for tg in range(2):
                    for r in range(4):
                        x = sb + (kb * 2 + tg) * 4 + r
                        ex.append(Ins(f"v_add_f32 v{x}, v{x}, v{V_NM+tg*4}"))
        for kb in range(2):
            for tg in range(2):
                for r in range(4):
                    x = sb + (kb * 2 + tg) * 4 + r
                    ex.append(Ins(f"v_exp_f32 v{x}, v{x}"))
        cv = []
        for tg in range(2):
            for kb in range(2):
                x = sb + (kb * 2 + tg) * 4
                cv.append(Ins(f"v_cvt_pk_bf16_f32 v{pbuf(j)+tg*4+kb*2}, v{x}, v{x+1}"))
                cv.append(Ins(f"v_cvt_pk_bf16_f32 v{pbuf(j)+tg*4+kb*2+1}, v{x+2}, v{x+3}"))
        e0 = s_end[j] if j != 1 else max(s_end[1], pv_first[0])
        for i in ex: i.earliest = e0; i.deadline = pv_first[j]
        for i in cv: i.earliest = (pv_end[j - 1] if j < 15 else pv_first[14]) if j else s_end[0]; i.deadline = pv_first[j]
        streams.append((ex + cv, None, None))
    for u in range(14):
        j = u + 1
        a = A_H + u * 4; h = V_T + 8; w = V_T + 12
        st = []
        for r in range(4): st.append(Ins(f"v_accvgpr_read_b32 v{h+r}, a{a+r}"))
        for r in range(4): st.append(Ins(f"v_mul_f32 v{w+r}, v{h+r}, v{h+r}"))
        for r in range(4): st.append(Ins(f"v_fma_f32 v{w+r}, v{w+r}, s{S_C3}, v{V_C1}"))
        for r in range(4): st.append(Ins(f"v_mul_f32 v{w+r}, v{w+r}, v{h+r}"))
        for r in range(4): st.append(Ins(f"v_exp_f32 v{w+r}, v{w+r}"))
        for r in range(4): st.append(Ins(f"v_add_f32 v{w+r}, 1.0, v{w+r}"))
        for r in range(4): st.append(Ins(f"v_rcp_f32 v{w+r}, v{w+r}"))
        for r in range(4): st.append(Ins(f"v_mul_f32 v{h+r}, v{h+r}, v{w+r}"))
        st.append(Ins(f"v_cvt_pk_bf16_f32 v{w}, v{h}, v{h+1}")); st.append(Ins(f"v_cvt_pk_bf16_f32 v{w+1}, v{h+2}, v{h+3}"))
        base = SCR_A + (u % 2) * 2048
        wr = Ins(f"ds_write_b64 v{V_HW}, {vr(w,2)} offset:{(u%2)*2048}", lds=lds_w([(base, base + 2048)], ('h', u)))
        st.append(wr)
        streams.append((st, p2bar[j - 1] + 1, p2bar[j] - 1))
        bar_extra.setdefault(p2bar[j], []).append(wr)
        rd = Ins(f"ds_read_b128 {ar(a,4)}, v{V_HR} offset:{(u%2)*2048}", lds=lds_r([(base, base + 2048)], ('h', u)))
        steps[p2bar[j] + 1].must.append(rd)
        bar_extra.setdefault(p2bar[j + 1] if j + 1 < 16 else None, []).append(rd)
    bar_extra.pop(None, None)

    store_flags = opt.get("store_flags", "")
    def epilogue(accb, seg, plane_off, e, dl):
        st = []
        t = V_P
        for tg in range(2):
            for tt_ in range(2):
                x = accb + (tt_ * 2 + tg) * 4
                st.append(Ins(f"v_cvt_pk_bf16_f32 v{t+tg*4+tt_*2}, v{x}, v{x+1}"))
                st.append(Ins(f"v_cvt_pk_bf16_f32 v{t+tg*4+tt_*2+1}, v{x+2}, v{x+3}"))
        st.append(Ins(f"s_mov_b32 s{S_STO}, {plane_off + seg * 2048}"))
        for tg in range(2):
            st.append(Ins(f"buffer_store_dwordx4 {vr(t+tg*4,4)}, v{V_ST}, {srd(S_WS)}, s{S_STO} offen offset:{tg*1024} {store_flags}".rstrip()))
        return st
    f_first = []; nseg = 0
    epi = []
    for s in range(7):
        gA = Group('w2', S_W2, V_DO, s * 128, tag=('w2', s, 0)); gB = Group('w2', S_W2, V_DO, s * 128 + 128 * 896, tag=('w2', s, 1))
        groups += [gA, gB]
        f_first.append(len(steps))
        accb = V_S + (nseg % 2) * 16; nseg += 1
        for ks in range(7):
            g = gA if ks < 4 else gB
            for t in range(2):
                f = frag(); mfs = []
                for tg in range(2):
                    acc = accb + (t * 2 + tg) * 4
                    mfs.append(Ins(f"{MF} {vr(acc,4)}, {ar(f,4)}, {ar(A_H + (ks*2+tg)*4, 4)}, {vr(acc,4) if ks else '0'}"))
                steps.append(Step(mfs, [Rd('tr', f, [g], ('o', t), (ks % 4) * 4096, 2048)], group=[g], name=f"f{s}.{ks}.{t}"))
        epi.append((accb, s, 8 * PLANE, len(steps)))
    o_first = []
    for s in range(7):
        gs = [Group('wo', S_WO, V_DO, s * 128 + q * 128 * 896, tag=('wo', s, q)) for q in range(4)]
        groups += gs
        o_first.append(len(steps))
        accb = V_S + (nseg % 2) * 16; nseg += 1
        for kap in range(16):
            g = gs[kap // 4]
            for t in range(2):
                f = frag(); mfs = []
                for tg in range(2):
                    acc = accb + (t * 2 + tg) * 4
                    mfs.append(Ins(f"{MF} {vr(acc,4)}, {ar(f,4)}, {ar(a_of(kap, tg), 4)}, {vr(acc,4) if kap else '0'}"))
                steps.append(Step(mfs, [Rd('tr', f, [g], ('o', t), (kap % 4) * 4096, 2048)], group=[g], name=f"o{s}.{kap}.{t}"))
        epi.append((accb, s, 0, len(steps)))
    nsteps = len(steps)
    seg_first = f_first + o_first + [nsteps, nsteps]
    fbar = []
    for s in range(7):
        fbar.append(seg_first[s + 1] - D - 1); barriers.append(fbar[-1])
    for s in range(7):
        barriers.append(o_first[s] + 16 - D - 1)
        if s < 6: barriers.append(o_first[s] + 32 - D - 1)
    tail = []
    for n, (accb, s, po, e) in enumerate(epi):
        st = epilogue(accb, s, po, e, None)
        if e >= nsteps: tail += st
        else: streams.append((st, e, min(seg_first[n + 2], nsteps) - 1))
    ofin0 = [Ins(f"v_rcp_f32 v{V_RL0}, v{V_L}"), Ins(f"v_rcp_f32 v{V_RL1}, v{V_L+4}")]
    of_reads = []
    for b in range(4):
        st = list(ofin0) if b == 0 else []
        scr = SCR_A if b % 2 == 0 else SCR_B
        wrs = []
        for n, (kk, tg) in enumerate([(2 * b, 0), (2 * b, 1), (2 * b + 1, 0), (2 * b + 1, 1)]):
            t = V_T + (n % 2) * 4
            a0 = V_ACC + ((2 * kk) * 2 + tg) * 4; a1 = V_ACC + ((2 * kk + 1) * 2 + tg) * 4
            rl = V_RL0 + tg
            for r in range(4): st.append(Ins(f"v_mul_f32 v{a0+r}, v{a0+r}, v{rl}"))
            for r in range(4): st.append(Ins(f"v_mul_f32 v{a1+r}, v{a1+r}, v{rl}"))
            st.append(Ins(f"v_cvt_pk_bf16_f32 v{t}, v{a0}, v{a0+1}")); st.append(Ins(f"v_cvt_pk_bf16_f32 v{t+1}, v{a0+2}, v{a0+3}"))
            st.append(Ins(f"v_cvt_pk_bf16_f32 v{t+2}, v{a1}, v{a1+1}")); st.append(Ins(f"v_cvt_pk_bf16_f32 v{t+3}, v{a1+2}, v{a1+3}"))
            w = Ins(f"ds_write_b128 v{V_OW}, {vr(t,4)} offset:{(scr - SCR_B) + n*1024}", lds=lds_w([(scr, scr + SLOT)], ('o', b)))
            st.append(w); wrs.append(w)
        e = p3_start if b == 0 else fbar[b - 1] + 1
        streams.append((st, e, fbar[b] - 1))
        bar_extra.setdefault(fbar[b], []).extend(wrs)
        rds = []
        for hh in range(2):
            for n, (kk, tg) in enumerate([(2 * b, 0), (2 * b, 1), (2 * b + 1, 0), (2 * b + 1, 1)]):
                rds.append(Ins(f"ds_read_b128 {ar(a_of(hh*8+kk, tg),4)}, v{V_OR} offset:{(scr - SCR_B) + hh*4096 + n*1024}", lds=lds_r([(scr, scr + SLOT)], ('o', b))))
        streams.append((rds, fbar[b] + 1, fbar[b + 1] - 2))
        bar_extra.setdefault(fbar[b + 1], []).append(rds[-1])
        of_reads += rds
    steps[o_first[0]].needs += [of_reads[-1]]
    steps[f_first[0]].needs += [steps[p2bar[14] + 1].must[-1]]
    scr_free = {8: fbar[4], 9: fbar[3]}
    scr_free = {8: fbar[4], 9: fbar[4]}

    barriers = sorted(set(barriers))
    for si, st in enumerate(steps):
        for g in (st.group or []):
            if g.first_read is None: g.first_read = si - D
            g.last_use = si
    import bisect
    def bar_after(x):
        k = bisect.bisect_left(barriers, x); return barriers[k] if k < len(barriers) else None
    def bar_before(x):
        k = bisect.bisect_left(barriers, x); return barriers[k - 1] if k else -1
    free_at = {s: -1 for s in range(9)}
    p1slots_done = False
    log = []
    def dma_ins(g):
        base = g.slot * SLOT
        l = [Ins(f"s_add_u32 m0, s{S_W4K}, {base}"), Ins(f"s_mov_b32 s{S_SOFF}, {g.soff}")]
        rs = [(base, base + SLOT)]
        for i in range(4):
            l.append(Ins(f"buffer_load_dwordx4 v{g.vo+i}, {srd(g.srdb)}, s{S_SOFF} offen offset:{i*1024} lds", lds=lds_w(rs, g.tag)))
        return l
    for g in groups:
        if g.slot is None:
            cands = dict(free_at)
            if g.kind in ('k', 'v', 'w2'): cands.pop(8, None); cands.pop(9, None)
            else:
                for s in (8, 9): cands[s] = max(cands.get(s, -1) if s in used_late else -1, scr_free[s])
            g.slot = min(cands, key=lambda s: (cands[s], s))
            fa = cands[g.slot]
            if g.slot >= 8: used_late.add(g.slot)
        else:
            fa = free_at[g.slot]
            used_late = set()
        free_at[g.slot] = bar_after(g.last_use)
        if free_at[g.slot] is None: free_at[g.slot] = 10**9
        g.ins = dma_ins(g)
        cert = bar_before(g.first_read)
        g.cert = cert
        g.fa = fa
    NPRO = opt.get("npro", 6)
    pro_groups = groups[:NPRO]
    def pace(x):
        if x < p2_start - 30: return opt.get("pace1", 1.85)
        if x < p3_start - 60: return opt.get("pace2", 3.5)
        return opt.get("pace3", 1.9)
    cur = 0.0
    for g in groups[NPRO:]:
        cur = max(cur, g.fa + 1)
        latest = g.cert - opt.get("minfl", 10) - 3
        poss = []
        for i in range(4):
            poss.append(int(min(cur, latest + i))); cur = min(cur, latest + i) + pace(cur)
        for a, b in zip(poss, poss[1:]): assert a <= b
        assert poss[0] > g.fa and poss[-1] < g.cert, (g.tag, poss, g.fa, g.cert)
        steps[poss[0]].must += g.ins[:3]
        for i in range(1, 4): steps[poss[i]].must.append(g.ins[2 + i])
        log.append((g.tag, g.slot, g.fa, poss, g.cert, g.cert - poss[-1]))
    if opt.get("log"):
        for l in log: print(l)
    cert_at = {}
    for g in groups: cert_at.setdefault(g.cert, []).append(g.ins[-1])

    idx = 0
    p1ra = [(('wq', m), r) for m in range(4) for r in range(2)] + [(('w1', m), r) for m in range(2) for r in range(3)]
    for k in p1ra: RA[k] = V_RA + idx; idx += 1
    p2k = [(('k', m), r) for m in range(2) for r in range(2)]
    for k in p2k: RA[k] = V_RA + idx; idx += 1
    assert idx == 18
    p2v = [(('v', m), r) for m in range(4) for r in range(2)]
    for n, k in enumerate(p2v): RA[k] = V_RA + n
    p3o = [(('o', m), r) for m in range(2) for r in range(3)]
    for n, k in enumerate(p3o): RA[k] = V_RA + 8 + n
    ra_v = [Ins(f"v_sub_u32 v{RA[k]}, v{RA[k]}, v{V_RL0}") for k in p2v]
    streams.append((ra_v, p2_start - 7 - D + 1, pv_first[0] - D - 1))
    ra_o = [Ins(f"s_mov_b32 s{S_T0}, 65536"), Ins(f"s_mov_b32 s{S_T1}, 131072")]
    for (k, r) in p3o:
        t = k[1]
        add = ["0", f"s{S_T0}", f"s{S_T1}"][r]
        ra_o.append(Ins(f"v_xad_u32 v{RA[(k, r)]}, v{V_RL1}, {t*32}, {add}"))
    streams.append((ra_o, p2_start + 2, p2_start + 40))

    def l2pf(srdb, vo): return Ins(f"buffer_load_dword v{V_DUM}, v{vo}, {srd(srdb)}, 0 offen")

    T = V_T
    L = V_LANE
    P(f"s_cmp_ge_u32 s2, 256"); P("s_cbranch_scc1 L_k1_end")
    P("s_load_dwordx16 s[8:23], s[0:1], 0"); P("s_load_dwordx8 s[24:31], s[0:1], 64"); P("s_load_dwordx2 s[32:33], s[0:1], 96")
    STR = [90, 94, 8, 12, 16, 20, 24, 28]
    PM = opt.get("stamp") == 4
    if PM: STR = [90, 92, 94, 96, 98, 100, 4, 6]
    def stamp(k):
        if PM: return []
        return [Ins(f"s_memtime s[{STR[k]}:{STR[k]+1}]"), Ins(f"s_memrealtime s[{STR[k]+2}:{STR[k]+3}]")] if opt.get("stamp") else []
    def pstamp(k):
        if PM: pro.append(Ins(f"s_memtime s[{STR[k]}:{STR[k]+1}]"))
    pstamp(0)
    pro.extend(stamp(0))
    P(f"s_getpc_b64 s[{S_CODE}:{S_CODE+1}]")
    P("L_k1_pc:")
    P(f"s_mov_b32 s{S_CODE+2}, L_code_end-L_k1_pc"); P(f"s_mov_b32 s{S_CODE+3}, 0x20000")
    P(f"v_and_b32 v{L}, 63, v0"); P(f"v_lshrrev_b32 v{T+1}, 6, v0")
    P(f"v_readfirstlane_b32 s{S_W}, v{T+1}")
    P(f"s_and_b32 s{S_J}, s2, 7"); P(f"s_lshr_b32 s{S_TT}, s2, 3")
    P(f"s_and_b32 s{S_HH}, s{S_W}, 1"); P(f"s_lshr_b32 s{S_G}, s{S_W}, 1"); P(f"s_lshl_b32 s{S_W4K}, s{S_W}, 12")
    S_U = S_BAD + 1
    P(f"s_lshl_b32 s{S_U}, s{S_TT}, 2"); P(f"s_add_u32 s{S_U}, s{S_U}, s{S_W}")
    P(f"v_mov_b32 v{T+15}, 0x7f000000")
    def pf_lin(dst, n):
        P(f"s_mul_i32 s{S_T0}, s{S_U}, {n}"); P(f"v_add_u32 v{dst}, s{S_T0}, v{L}"); P(f"v_lshlrev_b32 v{dst}, 7, v{dst}")
        P(f"v_cmp_gt_u32 vcc, {n}, v{L}"); P(f"v_cndmask_b32 v{dst}, v{T+15}, v{dst}, vcc")
    pf_lin(T, 5)
    P(f"buffer_load_dword v{V_DUM}, v{T}, {srd(S_CODE)}, 0 offen")
    P(f"v_lshrrev_b32 v{T+5}, 3, v{L}"); P(f"v_and_b32 v{T+6}, 7, v{L}"); P(f"v_lshlrev_b32 v{T+6}, 4, v{T+6}"); P(f"v_lshrrev_b32 v{T+7}, 4, v{L}")
    P(f"v_mul_u32_u24 v{T+3}, 896, v{T+5}"); P(f"s_mul_i32 s{S_T0}, s{S_W}, {16*896}"); P(f"v_add3_u32 v{T+3}, v{T+3}, v{T+6}, s{S_T0}")
    P(f"v_add_u32 v{T+4}, {8*896}, v{T+3}")
    PF = 120
    pf_lin(PF + 0, 28)
    P(f"v_and_b32 v{T+9}, 0x380, v{PF}"); P(f"v_and_b32 v{T+10}, 0xfffffc00, v{PF}"); P(f"v_lshl_add_u32 v{T+10}, v{T+10}, 3, v{T+9}")
    P(f"v_cndmask_b32 v{PF}, v{T+15}, v{T+10}, vcc")
    pf_lin(PF + 1, 14)
    P(f"v_and_b32 v{T+9}, 0x180, v{PF+1}"); P(f"v_lshrrev_b32 v{T+10}, 9, v{PF+1}"); P(f"v_mul_u32_u24 v{T+10}, 3584, v{T+10}"); P(f"v_add_u32 v{T+10}, v{T+10}, v{T+9}")
    P(f"v_cndmask_b32 v{PF+1}, v{T+15}, v{T+10}, vcc")
    P(f"s_mul_i32 s{S_T1}, s{S_TT}, 57344")
    P("s_waitcnt lgkmcnt(0)")
    pstamp(1)
    def mk_srd(b, ptr, off_s, size):
        P(f"s_add_u32 s{b}, s{ptr}, s{off_s}"); P(f"s_addc_u32 s{b+1}, s{ptr+1}, 0")
        if isinstance(size, tuple): P(f"s_sub_u32 s{b+2}, {size[1]}, s{off_s}")
        else: P(f"s_mov_b32 s{b+2}, {size}")
        P(f"s_mov_b32 s{b+3}, 0x20000")
    if opt.get("stamp"): P("s_mov_b32 s34, s30"); P("s_mov_b32 s35, s31")
    mk_srd(S_X, 8, S_T1, 57344)
    P(f"s_lshl_b32 s{S_T0}, s{S_J}, 10"); mk_srd(S_WQ, 14, S_T0, ('sub', 448 * 8192))
    P(f"s_mul_i32 s{S_T0}, s{S_J}, 448"); mk_srd(S_W1, 20, S_T0, ('sub', 448 * 3584)); mk_srd(S_B1, 22, S_T0, 448)
    if opt.get("l2pf", 1) and not opt.get("pfafter"):
        pro.append(l2pf(S_WQ, PF)); pro.append(l2pf(S_W1, PF + 1))
    xl = [P(f"buffer_load_dwordx4 {vr(V_XR+4*(h*7+n),4)}, v{T+3+h}, {srd(S_X)}, 0 offen offset:{128*n}") for n in range(7) for h in range(2)]
    if opt.get("l2pf", 1) and opt.get("pfafter"):
        pro.append(l2pf(S_WQ, PF)); pro.append(l2pf(S_W1, PF + 1))
    pstamp(2)
    P(f"s_lshl_b32 s{S_T1}, s{S_W}, 7")
    P(f"v_and_b32 v{T+8}, 1, v{T+7}"); P(f"v_lshlrev_b32 v{T+8}, 5, v{T+8}"); P(f"v_xor_b32 v{T+8}, v{T+8}, v{T+6}")
    P(f"v_xor_b32 v{T+9}, 64, v{T+8}")
    P(f"v_lshlrev_b32 v{T+10}, 13, v{T+5}"); P(f"v_add_u32 v{T+10}, s{S_T1}, v{T+10}")
    for i in range(4):
        P(f"v_add_u32 v{V_DQ+i}, v{T+10}, v{T+8+(i&1)}")
        if i: P(f"v_add_u32 v{V_DQ+i}, {i*8*8192 - i*1024}, v{V_DQ+i}")
    P(f"v_mul_u32_u24 v{T+10}, 3584, v{T+5}"); P(f"v_add_u32 v{T+10}, s{S_T1}, v{T+10}")
    P(f"s_cmp_eq_u32 s{S_W}, 3"); P(f"s_cselect_b32 s{S_T0}, 0x1000000, 0")
    for i in range(4):
        P(f"v_and_b32 v{T+11}, 64, v{T+8+(i&1)}"); P(f"v_mul_lo_u32 v{T+11}, v{T+11}, s{S_T0}")
        P(f"v_add3_u32 v{V_D1+i}, v{T+10}, v{T+8+(i&1)}, v{T+11}")
        if i: P(f"v_add_u32 v{V_D1+i}, {i*8*3584 - i*1024}, v{V_D1+i}")
    P(f"v_lshlrev_b32 v{T+11}, 3, v{T+7}"); P(f"s_lshl_b32 s{S_T0}, s{S_HH}, 5"); P(f"v_add_u32 v{T+11}, s{S_T0}, v{T+11}")
    bl = [P(f"buffer_load_dwordx2 {vr(2*i,2)}, v{T+11}, {srd(S_B1)}, 0 offen offset:{64*i}") for i in range(7)]
    pstamp(3)
    P(f"v_bfe_u32 v{T+8}, v{L}, 2, 2"); P(f"v_and_b32 v{T+9}, 3, v{L}"); P(f"v_lshlrev_b32 v{T+9}, 3, v{T+9}")
    P(f"v_and_b32 v{T+10}, 1, v{T+7}"); P(f"v_lshlrev_b32 v{T+10}, 6, v{T+10}"); P(f"v_lshrrev_b32 v{T+11}, 1, v{T+8}"); P(f"v_lshl_or_b32 v{T+10}, v{T+11}, 5, v{T+10}")
    P(f"v_lshl_or_b32 v{T+9}, v{T+8}, 7, v{T+9}"); P(f"v_or_b32 v{T+9}, v{T+9}, v{T+10}")
    P(f"v_lshl_add_u32 v{T+2}, v{T+7}, 10, v{T+9}")
    P(f"v_lshl_add_u32 v{T+3}, v{T+7}, 9, v{T+9}")
    P(f"s_lshl_b32 s{S_T0}, s{S_HH}, 14"); P(f"s_lshl_b32 s{S_T1}, s{S_HH}, 5")
    for m in range(4):
        P(f"v_xor_b32 v{RA[(('wq',m),0)]}, {m*32}, v{T+2}"); P(f"v_add_u32 v{RA[(('wq',m),0)]}, s{S_T0}, v{RA[(('wq',m),0)]}")
        P(f"v_add_u32 v{RA[(('wq',m),1)]}, 65536, v{RA[(('wq',m),0)]}")
    for m in range(2):
        P(f"v_xor_b32 v{RA[(('w1',m),0)]}, {m*64}, v{T+2}"); P(f"v_xor_b32 v{RA[(('w1',m),0)]}, s{S_T1}, v{RA[(('w1',m),0)]}")
        P(f"v_add_u32 v{RA[(('w1',m),1)]}, 65536, v{RA[(('w1',m),0)]}"); P(f"v_add_u32 v{RA[(('w1',m),2)]}, 131072, v{RA[(('w1',m),0)]}")
    P(f"v_lshlrev_b32 v{V_RL0}, 9, v{T+7}"); P(f"v_add_u32 v{V_RL0}, s{S_T0}, v{V_RL0}")
    P(f"s_lshl_b32 s{S_T1}, s{S_HH}, 6"); P(f"v_xor_b32 v{V_RL1}, s{S_T1}, v{T+3}")
    P(f"v_and_b32 v{T+8}, 15, v{L}")
    P(f"v_lshrrev_b32 v{T+9}, 2, v{T+8}"); P(f"v_sub_u32 v{T+9}, 0, v{T+9}"); P(f"v_and_b32 v{T+9}, 3, v{T+9}"); P(f"v_xor_b32 v{T+9}, v{T+9}, v{T+7}")
    P(f"v_lshlrev_b32 v{T+9}, 4, v{T+9}"); P(f"v_lshl_or_b32 v{T+9}, v{T+8}, 6, v{T+9}")
    P(f"s_lshl_b32 s{S_T0}, s{S_G}, 11"); P(f"s_add_u32 s{S_T0}, s{S_T0}, {SCR_A}"); P(f"v_add_u32 v{V_XRD}, s{S_T0}, v{T+9}")
    P(f"v_lshrrev_b32 v{T+9}, 5, v{L}"); P(f"v_sub_u32 v{T+9}, 0, v{T+9}"); P(f"v_and_b32 v{T+9}, 3, v{T+9}")
    P(f"v_and_b32 v{T+10}, 3, v{L}"); P(f"v_xor_b32 v{T+9}, v{T+9}, v{T+10}"); P(f"v_lshlrev_b32 v{T+9}, 4, v{T+9}")
    P(f"v_lshl_or_b32 v{T+9}, v{T+5}, 6, v{T+9}")
    P(f"v_bfe_u32 v{T+10}, v{L}, 2, 1"); P(f"v_lshl_or_b32 v{T+9}, v{T+10}, 12, v{T+9}")
    P(f"s_lshl_b32 s{S_T0}, s{S_W}, 10"); P(f"s_add_u32 s{S_T0}, s{S_T0}, {SCR_A}"); P(f"v_add_u32 v{V_XW[0]}, s{S_T0}, v{T+9}")
    P(f"v_xor_b32 v{V_XW[1]}, 32, v{V_XW[0]}"); P(f"v_add_u32 v{V_XW[1]}, 512, v{V_XW[1]}")
    for r in range(4): P(f"v_mov_b32 v{V_ONE+r}, 0x3f803f80")
    late = []
    Q = lambda t: late.append(Ins(t))
    LT = 112
    P(f"s_lshl_b32 s{S_T0}, s{S_J}, 20"); P(f"s_add_u32 s{S_T0}, s{S_T0}, {1536*512}")
    mk_srd(S_K, 10, S_T0, 262144); mk_srd(S_V, 12, S_T0, 262144)
    P(f"s_mul_i32 s{S_T0}, s{S_J}, 458752"); mk_srd(S_WO, 16, S_T0, 458752)
    P(f"s_mul_i32 s{S_T0}, s{S_J}, 200704"); mk_srd(S_W2, 24, S_T0, 200704)
    P(f"s_mul_i32 s{S_T0}, s{S_J}, {PLANE}"); mk_srd(S_WS, 32, S_T0, 9 * PLANE)
    P(f"s_mov_b32 s{S_QC}, {f32(math.log2(math.e)/16)}")
    C1 = -2 * math.log2(math.e) * math.sqrt(2 / math.pi)
    P(f"s_mov_b32 s{S_C3}, {f32(C1*0.044715)}"); P(f"v_mov_b32 v{V_C1}, {f32(C1)}")
    P(f"s_lshl_b32 s{S_T1}, s{S_W}, 7")
    P(f"v_lshlrev_b32 v{T+10}, 9, v{T+5}"); P(f"v_add_u32 v{T+10}, s{S_T1}, v{T+10}")
    P(f"v_lshlrev_b32 v{T+11}, 4, v{T+7}"); P(f"v_xor_b32 v{T+11}, v{T+11}, v{T+6}")
    for i in range(4):
        P(f"v_xad_u32 v{V_DK+i}, v{T+11}, {64*(i&1)}, v{T+10}")
        if i: P(f"v_add_u32 v{V_DK+i}, {i*8*512 - i*1024}, v{V_DK+i}")
    P(f"v_lshlrev_b32 v{T+11}, 5, v{T+7}"); P(f"v_xor_b32 v{T+11}, v{T+11}, v{T+6}")
    P(f"v_add_u32 v{V_DV}, v{T+10}, v{T+11}")
    for i in range(1, 4): P(f"v_add_u32 v{V_DV+i}, {i*8*512 - i*1024}, v{V_DV}")
    P(f"v_mul_u32_u24 v{T+10}, 896, v{T+5}"); P(f"s_mul_i32 s{S_T0}, s{S_W}, 28672"); P(f"v_add3_u32 v{V_DO}, v{T+10}, v{T+11}, s{S_T0}")
    for i in range(1, 4): P(f"v_add_u32 v{V_DO+i}, {i*8*896 - i*1024}, v{V_DO}")
    P(f"v_lshrrev_b32 v{T+9}, 1, v{T+8}"); P(f"v_xor_b32 v{T+9}, v{T+9}, v{T+7}"); P(f"v_lshlrev_b32 v{T+9}, 4, v{T+9}")
    P(f"v_lshl_or_b32 v{RA[(('k',0),0)]}, v{T+8}, 7, v{T+9}"); P(f"v_xor_b32 v{RA[(('k',1),0)]}, 64, v{RA[(('k',0),0)]}")
    for m in range(2): P(f"v_add_u32 v{RA[(('k',m),1)]}, 65536, v{RA[(('k',m),0)]}")
    P(f"v_lshlrev_b32 v{T+9}, 4, v{L}")
    P(f"s_lshl_b32 s{S_T0}, s{S_G}, 10"); P(f"s_add_u32 s{S_T0}, s{S_T0}, {SCR_A}"); P(f"v_add_u32 v{V_HR}, s{S_T0}, v{T+9}")
    P(f"s_lshl_b32 s{S_T0}, s{S_HH}, 3"); P(f"v_add_u32 v{V_HW}, s{S_T0}, v{V_HR}")
    P(f"s_add_u32 s{S_T0}, s{S_W4K}, {SCR_B}"); P(f"v_add_u32 v{V_OW}, s{S_T0}, v{T+9}")
    P(f"s_lshl_b32 s{S_T0}, s{S_G}, 13"); P(f"s_add_u32 s{S_T0}, s{S_T0}, {SCR_B}"); P(f"v_add_u32 v{V_OR}, s{S_T0}, v{T+9}")
    P(f"s_mul_i32 s{S_T0}, s{S_U}, 14336"); P(f"v_add_u32 v{V_ST}, s{S_T0}, v{T+9}")
    if opt.get("oob"):
        for b in (S_WQ, S_W1, S_K, S_V, S_WO, S_W2): P(f"s_mov_b32 s{b+2}, 0")
    pstamp(4)
    pro.append(wait_vm(xl[-1]))
    pstamp(5)
    pro.extend(stamp(1))
    rest = sum([g.ins for g in pro_groups], [])
    st = []
    for a in range(4): st.append(Ins(f"v_mov_b32 v{T+8+a}, 0"))
    for n in range(7):
        for dw in range(4):
            for h in range(2):
                x = V_XR + (h * 7 + n) * 4 + dw
                st.append(Ins(f"v_dot2_f32_bf16 v{T+8+h}, v{x}, v{V_ONE}, v{T+8+h}"))
                st.append(Ins(f"v_dot2_f32_bf16 v{T+10+h}, v{x}, v{x}, v{T+10+h}"))
    for mod in ("quad_perm:[1,0,3,2]", "quad_perm:[2,3,0,1]", "row_half_mirror"):
        for a in range(4): st.append(Ins(f"v_add_f32_dpp v{T+8+a}, v{T+8+a}, v{T+8+a} {mod} row_mask:0xf bank_mask:0xf"))
    for a in range(4): st.append(Ins(f"v_mul_f32 v{T+8+a}, {f32(1/448)}, v{T+8+a}"))
    for h in range(2): st.append(Ins(f"v_fma_f32 v{T+10+h}, -v{T+8+h}, v{T+8+h}, v{T+10+h}"))
    for h in range(2): st.append(Ins(f"v_max_f32 v{T+10+h}, 0, v{T+10+h}"))
    for h in range(2): st.append(Ins(f"v_add_f32 v{T+10+h}, {f32(1e-5)}, v{T+10+h}"))
    for h in range(2): st.append(Ins(f"v_rsq_f32 v{V_RSTD[h]}, v{T+10+h}"))
    for h in range(2): st.append(Ins(f"v_mul_f32 v{V_NB[h]}, v{T+8+h}, v{V_RSTD[h]}"))
    for h in range(2): st.append(Ins(f"v_sub_f32 v{V_NB[h]}, 0, v{V_NB[h]}"))
    st += ln_piece(0)
    st.append(wait_vm(bl[-1]))
    for i in range(7):
        st += [Ins(f"v_lshlrev_b32 v{T+8}, 16, v{2*i}"), Ins(f"v_and_b32 v{T+9}, 0xffff0000, v{2*i}"),
               Ins(f"v_lshlrev_b32 v{T+10}, 16, v{2*i+1}"), Ins(f"v_and_b32 v{T+11}, 0xffff0000, v{2*i+1}")]
        for tg in range(2):
            for r in range(4): st.append(Ins(f"v_accvgpr_write_b32 a{A_H + (i*2+tg)*4 + r}, v{T+8+r}"))
    ndma = max(1, sum(1 for i in rest if i.kind == 'vmem'))
    every = opt.get("proevery", max(1, len(st) // ndma))
    for k, i in enumerate(st):
        pro.append(i)
        if k % every == every - 1:
            while rest:
                x = rest.pop(0); pro.append(x)
                if x.kind == 'vmem': break
    pro.extend(rest)
    if opt.get("l2pf", 1):
        def pf_late(n, srds, at):
            l = [Ins(f"s_mul_i32 s{S_T0}, s{S_U}, {n}"), Ins(f"v_add_u32 v{V_T+15}, s{S_T0}, v{L}"), Ins(f"v_lshlrev_b32 v{V_T+15}, 7, v{V_T+15}"),
                 Ins(f"v_cmp_gt_u32 vcc, {n}, v{L}"), Ins(f"v_mov_b32 v{V_DUM2}, 0x7f000000"), Ins(f"v_cndmask_b32 v{V_T+15}, v{V_DUM2}, v{V_T+15}, vcc")]
            l += [l2pf(b, V_T + 15) for b in srds]
            streams.append((l, at, at + 8))
        V_DUM2 = V_T + 11
        pf_late(16, [S_K, S_V], opt.get("pfkv", p1_first[4]))
        pf_late(13, [S_W2], opt.get("pfw2", p1_first[9]))
        pf_late(28, [S_WO], opt.get("pfwo", p1_first[11]))
    pstamp(6)
    pro.append(wait_lgkm(xw_ins[0])); pro.append(wait_vm(cert_at.get(-1, [])))
    P("s_barrier")
    pstamp(7)
    rd0 = xb_reads(0); pro.extend(rd0); steps[0].needs += rd0

    for st in steps: st.reads = sum([make_reads(r) for r in st.reads], [])
    for si in range(D): pro.extend(steps[si].reads)
    S = []
    for (lst, e, dl) in streams:
        for i in lst:
            if i.earliest is None: i.earliest = e
            if i.deadline is None: i.deadline = dl + 1
        S.append(list(lst))
    CAP = opt.get("cap", 4)
    seq = list(pro) + stamp(2)
    barset = set(barriers)
    loads = []
    for si, st in enumerate(steps):
        toks = list(st.needs)
        if st.reads: toks.append(st.reads[-1])
        if si % 2 == 0 and si + 1 < nsteps and steps[si + 1].reads: toks.append(steps[si + 1].reads[-1])
        if toks: seq.append(wait_lgkm(toks))
        F = []
        if si + D < nsteps: F += steps[si + D].reads
        F += st.must
        load = sum(i.cost for i in F) + (2 if si in barset else 0) + 0.5
        def take(q):
            i = q.pop(0); F.append(i); return i.cost
        act = [q for q in S if q and q[0].earliest <= si]
        for q in act:
            dl = None
            n_now = 0; cum = 0
            for k, i in enumerate(q):
                if i.earliest > si: break
                left = i.deadline - si
                assert left >= 1, f"missed deadline {i.text} at step {si}"
                need = math.ceil((k + 1) / left) if left > 1 else k + 1
                if left == 1 or opt.get("even", 1): n_now = max(n_now, need if left > 1 and (k + 1) / left >= 1 else (k + 1 if left == 1 else 0))
            for _ in range(n_now):
                if q and q[0].earliest <= si: load += take(q)
        while load < CAP:
            act = [q for q in S if q and q[0].earliest <= si and load + q[0].cost <= CAP + 0.5]
            if not act: break
            q = min(act, key=lambda q: q[0].deadline)
            load += take(q)
        loads.append(load)
        tot = sum(i.cost for i in F) + (2 if si in barset else 0)
        g1 = []; c = 0
        while F and c + F[0].cost <= (tot + 1) // 2:
            c += F[0].cost; g1.append(F.pop(0))
        seq.append(st.mf[0]); seq += g1; seq.append(st.mf[1]); seq += F
        if si in barset:
            if bar_extra.get(si): seq.append(wait_lgkm(bar_extra[si]))
            if cert_at.get(si): seq.append(wait_vm(cert_at[si]))

            seq.append(Ins("s_barrier"))
        stp = {p2_start - 1: 3, p3_start - 1: 4, o_first[0] - 1: 5, nsteps - 1: 6}
        if opt.get("stamp") == 2: stp = {p1_first[2] - 1: 3, p1_first[5] - 1: 4, p1_first[9] - 1: 5, p1_first[13] - 1: 6}
        if opt.get("stamp") == 3: stp = {p2_start - 1: 3, pv_first[0] - 1: 4, pv_end[4] - 1: 5, pv_end[12] - 1: 6}
        if si in stp: seq += stamp(stp[si])
    assert all(not q for q in S), [q[0].text for q in S if q]
    seq += tail
    if opt.get("stamp"):
        seq.append(Ins("s_waitcnt vmcnt(0)"))
        seq += stamp(7); seq.append(Ins("s_waitcnt lgkmcnt(0)"))
        for k in range(8): seq += [Ins(f"v_mov_b32 v{2*k}, s{STR[k]}"), Ins(f"v_mov_b32 v{2*k+1}, s{STR[k]+(0 if PM else 2)}")]
        seq += [Ins(f"s_lshl_b32 s{S_T0}, s2, 8"), Ins(f"s_lshl_b32 s{S_T1}, s{S_W}, 6"),
                Ins(f"s_add_u32 s{S_T0}, s{S_T0}, s{S_T1}"), Ins(f"s_add_u32 s36, s32, {64<<20}"), Ins("s_addc_u32 s37, s33, 0"),
                Ins("s_mov_b32 s38, 65536"), Ins("s_mov_b32 s39, 0x20000"), Ins(f"v_mov_b32 v20, s{S_T0}")]
        for k in range(4): seq.append(Ins(f"buffer_store_dwordx4 v[{4*k}:{4*k+3}], v20, s[36:39], 0 offen offset:{16*k}"))
        if opt.get("dbgwg") is not None:
            for k in range(7, 0, -1):
                seq += [Ins(f"v_sub_u32 v{2*k}, v{2*k}, v0"), Ins(f"v_sub_u32 v{2*k+1}, v{2*k+1}, v1")]
            seq += [Ins(f"s_cmp_eq_u32 s{S_U}, {(opt['dbgwg']>>3)*4}"), Ins("s_cselect_b32 s38, 64, 0"), Ins(f"s_cmp_eq_u32 s{S_J}, {opt['dbgwg']&7}"), Ins("s_cselect_b32 s38, s38, 0"),
                    Ins("s_mov_b32 s36, s34"), Ins("s_mov_b32 s37, s35"), Ins("v_mov_b32 v20, 0")]
            for k in range(4): seq.append(Ins(f"buffer_store_dwordx4 v[{4*k}:{4*k+3}], v20, s[36:39], 0 offen offset:{16*k}"))
    seq.append(Ins("L_k1_end:")); seq.append(Ins("s_endpgm"))
    seq = resolve_waits(seq)
    check_data_waits([i for i in seq if not (i.wr == [('v', V_DUM)])])
    verify_lds(seq)
    own = {id(i): g for g in groups for i in g.ins}
    curg = None
    for i in seq:
        g = own.get(id(i))
        if g is None: continue
        if i.kind == 'salu': curg = g
        else: assert curg is g, ("m0 clobber", g.tag)
    if opt.get("nodma"): seq = [i for i in seq if not (i.kind == 'vmem' and ' lds' in i.text and i.pos > len(pro))]
    if opt.get("novmwait"):
        for i in seq:
            if i.op == 's_waitcnt' and i.pos > len(pro) and 'vmcnt' in i.text and i.pos < len(seq) - 60:
                i.text = re.sub(r'vmcnt\(\d+\)', 'vmcnt(63)', i.text)
    if opt.get("nobar"): seq = [i for i in seq if not (i.op == 's_barrier' and i.pos > len(pro))]
    seq = pad_hazards(seq)
    if opt.get("log"):
        def avg(a, b): return sum(loads[a:b]) / (b - a)
        print("avg load p1 %.2f p2 %.2f ffn2 %.2f oproj %.2f" % (avg(0, p2_start), avg(p2_start, p3_start), avg(p3_start, o_first[0]), avg(o_first[0], nsteps)))
        print("n instr", len(seq), "nops", sum(1 for i in seq if i.note == 'hz'), "waits", sum(1 for i in seq if i.op == 's_waitcnt'), "barriers", sum(1 for i in seq if i.op == 's_barrier'))
    return seq

def gen_k2(opt):
    q = []
    P = lambda t, **k: (q.append(Ins(t, **k)), q[-1])[1]
    P("s_cmp_ge_u32 s2, 448"); P("s_cbranch_scc1 L_k2_end")
    P("s_load_dwordx2 s[4:5], s[0:1], 96"); P("s_load_dwordx2 s[6:7], s[0:1], 0"); P("s_load_dwordx4 s[8:11], s[0:1], 72")
    if opt.get("stamp"): P("s_memrealtime s[60:61]")
    P("s_lshl_b32 s3, s2, 12"); P("v_lshlrev_b32 v1, 4, v0"); P("v_add_u32 v1, s3, v1")
    P("v_lshrrev_b32 v2, 6, v0"); P("v_readfirstlane_b32 s30, v2")
    P("s_waitcnt lgkmcnt(0)")
    P("s_mov_b32 s12, s4"); P("s_mov_b32 s13, s5"); P(f"s_mov_b32 s14, {16*PLANE}"); P("s_mov_b32 s15, 0x20000")
    order = list(range(8, 16)) + list(range(8))
    ld = {}
    for p in order:
        P(f"s_mov_b32 s{40+p}, {p*PLANE}")
        ld[p] = P(f"buffer_load_dwordx4 v[{16+4*p}:{19+4*p}], v1, s[12:15], s{40+p} offen")
        if p == 15:
            P("s_lshl_b32 s31, s2, 2"); P("s_add_u32 s31, s31, s30")
            P("s_and_b32 s32, s31, 1"); P("s_lshr_b32 s33, s31, 1")
            P(f"s_mul_hi_u32 s34, s33, {(2**32 + 6)//7}"); P("s_mul_i32 s35, s34, 7"); P("s_sub_u32 s35, s33, s35")
            P("s_and_b32 s36, s34, 1"); P("s_lshr_b32 s37, s34, 1")
            P("s_lshl_b32 s37, s37, 5"); P("s_lshl_b32 s32, s32, 4"); P("s_add_u32 s37, s37, s32")
            P("s_lshl_b32 s35, s35, 7"); P("s_lshl_b32 s36, s36, 6"); P("s_add_u32 s35, s35, s36")
            P("v_and_b32 v3, 15, v0"); P("v_add_u32 v3, s37, v3"); P("v_mul_u32_u24 v3, 896, v3")
            P("v_bfe_u32 v4, v0, 4, 2"); P("v_lshlrev_b32 v4, 3, v4"); P("v_add_u32 v4, s35, v4"); P("v_add_u32 v3, v3, v4")
            P("s_mov_b32 s16, s6"); P("s_mov_b32 s17, s7"); P(f"s_mov_b32 s18, {PLANE}"); P("s_mov_b32 s19, 0x20000")
            P("s_mov_b32 s20, s8"); P("s_mov_b32 s21, s9"); P("s_mov_b32 s22, 896"); P("s_mov_b32 s23, 0x20000")
            P("s_mov_b32 s24, s10"); P("s_mov_b32 s25, s11"); P(f"s_mov_b32 s26, {PLANE}"); P("s_mov_b32 s27, 0x20000")
            b2a = P("buffer_load_dwordx2 v[8:9], v4, s[20:23], 0 offen"); b2b = P("buffer_load_dwordx2 v[10:11], v4, s[20:23], 0 offen offset:32")
            xa = P("buffer_load_dwordx2 v[12:13], v3, s[16:19], 0 offen"); xb = P("buffer_load_dwordx2 v[14:15], v3, s[16:19], 0 offen offset:32")
    P("s_mov_b32 s28, 0x3f80"); P("s_mov_b32 s29, 0x3f800000")
    B = 80; Sx = 88
    def accum(dst, src, first):
        for dw in range(4):
            for h in range(2):
                P(f"v_dot2_f32_bf16 v{dst+dw*2+h}, v{src+dw}, s{28+h}, {'0' if first else 'v%d' % (dst+dw*2+h)}")
    for n, p in enumerate(range(8, 16)):
        q.append(wait_vm(ld[p])); accum(B, 16 + 4 * p, n == 0)
    q.append(wait_vm(b2b)); accum(B, 8, False)
    G = 96
    for e in range(8): P(f"v_mul_f32 v{G+e}, {f32(-math.log2(math.e))}, v{B+e}")
    for e in range(8): P(f"v_exp_f32 v{G+e}, v{G+e}")
    for e in range(8): P(f"v_add_f32 v{G+e}, 1.0, v{G+e}")
    for e in range(8): P(f"v_rcp_f32 v{G+e}, v{G+e}")
    for e in range(8): P(f"v_mul_f32 v{G+e}, v{G+e}, v{B+e}")
    for n, p in enumerate(range(8)):
        q.append(wait_vm(ld[p])); accum(Sx, 16 + 4 * p, n == 0)
    for e in range(8): P(f"v_mul_f32 v{Sx+e}, v{Sx+e}, v{G+e}")
    accum(Sx, 12, False)
    for dw in range(4): P(f"v_cvt_pk_bf16_f32 v{4+dw}, v{Sx+2*dw}, v{Sx+2*dw+1}")
    P("buffer_store_dwordx2 v[4:5], v3, s[24:27], 0 offen"); P("buffer_store_dwordx2 v[6:7], v3, s[24:27], 0 offen offset:32")
    if opt.get("stamp"):
        P("s_waitcnt vmcnt(0)"); P("s_memrealtime s[62:63]"); P("s_waitcnt lgkmcnt(0)")
        P("v_mov_b32 v4, s60"); P("v_mov_b32 v5, s62"); P("s_lshl_b32 s31, s31, 3"); P("v_mov_b32 v6, s31")
        P(f"s_add_u32 s12, s4, {(64<<20) + 65536}"); P("s_addc_u32 s13, s5, 0"); P("s_mov_b32 s14, 65536")
        P("buffer_store_dwordx2 v[4:5], v6, s[12:15], 0 offen")
        if opt.get("dbgwg") is not None:
            P("s_load_dwordx2 s[64:65], s[0:1], 88")
            P(f"s_add_u32 s12, s4, {(64<<20) + opt['dbgwg']*256}"); P("s_addc_u32 s13, s5, 0"); P("s_mov_b32 s14, 64")
            P("v_lshlrev_b32 v6, 2, v0"); ld_ = P("buffer_load_dword v7, v6, s[12:15], 0 offen"); ld0 = P("buffer_load_dword v8, v6, s[12:15], 0 offen")
            P("s_waitcnt vmcnt(0) lgkmcnt(0)")
            P("v_readlane_b32 s66, v7, 0"); P("v_readlane_b32 s67, v7, 1")
            P("v_and_b32 v9, 1, v0"); P("v_cmp_eq_u32 vcc, 1, v9"); P("v_mov_b32 v9, s66"); P("v_mov_b32 v10, s67"); P("v_cndmask_b32 v9, v9, v10, vcc")
            P("v_sub_u32 v7, v7, v9")
            P("s_sub_u32 s60, s60, s67"); P("s_sub_u32 s62, s62, s67"); P("v_writelane_b32 v7, s60, 0"); P("v_writelane_b32 v7, s62, 1")
            P("s_mov_b32 s12, s64"); P("s_mov_b32 s13, s65"); P("s_cmp_eq_u32 s31, 0"); P("s_cselect_b32 s14, 64, 0")
            P("buffer_store_dword v7, v6, s[12:15], 0 offen")
    P("L_k2_end:"); P("s_endpgm")
    q = resolve_waits(q); check_data_waits(q); q = pad_hazards(q)
    return q

def kd(name, vg, acc):
    return f""".amdhsa_kernel {name}
  .amdhsa_next_free_vgpr {vg}
  .amdhsa_next_free_sgpr 102
  .amdhsa_accum_offset {acc}
  .amdhsa_group_segment_fixed_size 0
  .amdhsa_kernarg_size 104
  .amdhsa_user_sgpr_count 2
  .amdhsa_user_sgpr_kernarg_segment_ptr 1
  .amdhsa_system_sgpr_workgroup_id_x 1
.end_amdhsa_kernel
"""
def build(opt):
    ref = open(f"cdna_kernels/{NAME}.s.ref").read().split("\n")
    hdr = [l for l in ref[:16] if l.startswith(";") and "@launch" not in l and "Override" not in l and "grid=ceil" not in l]
    out = hdr + ["; @launch kernel=fused_attn_ffn_kernel grid=(256,1,1) block=(256,1,1) lds=163840",
                 "; @launch kernel=reduce_gate_kernel grid=(448,1,1) block=(256,1,1) lds=0",
                 '.amdgcn_target "amdgcn-amd-amdhsa--gfx950"', ".text"]
    for nm, seq in (("fused_attn_ffn_kernel", gen_k1(opt)), ("reduce_gate_kernel", gen_k2(opt))):
        out += [f".globl {nm}", ".p2align 8", f".type {nm},@function", f"{nm}:"]
        out += [(i.text if i.label else "    " + i.text) for i in seq]
    out += ["L_code_end:", '.section .rodata,"a"', ".p2align 6", kd("fused_attn_ffn_kernel", 512, 256), ".p2align 6", kd("reduce_gate_kernel", 104, 104)]
    return "\n".join(out) + "\n"

if __name__ == "__main__":
    opt = dict(log=0)
    for a in sys.argv[2:]:
        k, v = a.split("=")
        try: v = int(v)
        except ValueError:
            try: v = float(v)
            except ValueError: v = v.replace("+", " ")
        opt[k] = v
    txt = build(opt)
    open(sys.argv[1] if len(sys.argv) > 1 else f"cdna_kernels/{NAME}.s", "w").write(txt)
```
